```python
import torch

def _softmax(x, axis=-1):
    return torch.softmax(x, dim=axis)
def _gelu(x):
    return torch.nn.functional.gelu(x, approximate="tanh")
def _silu(x):
    return torch.nn.functional.silu(x)
def _sigmoid(x):
    return torch.sigmoid(x)
def _layernorm(x, axis=-1, eps=1e-5):
    m = x.mean(dim=axis, keepdim=True)
    v = x.var(dim=axis, keepdim=True, unbiased=False)
    return (x - m) / torch.sqrt(v + eps)
def _scatter_add(tgt, idx, src, axis=0):
    return tgt.clone().index_add_(axis, idx, src)
def _segment_sum(src, seg, n):
    out = torch.zeros((n,) + src.shape[1:], dtype=src.dtype)
    return out.index_add_(0, seg, src)
def _pad(x, pw):
    flat = tuple(v for pair in reversed(pw) for v in pair)
    return torch.nn.functional.pad(x, flat)

kernel_name = 'gated_mix__softmax_full_mha__mixer_token_mlp__prompt'

def setup_inputs():

    _w = (lambda a: (lambda t: t.to(torch.bfloat16) if t.is_floating_point() else t)(torch.as_tensor(a)))
    def _A_setup():
        B, S, D = 1, 2048, 512
        return {
            "x": _w((lambda *s: torch.randn(*s, dtype=torch.bfloat16) * 0.05)(B, S, D)),
            "wqkv": _w((lambda *s: torch.randn(*s, dtype=torch.bfloat16) * 0.8)(D, 3 * D)),
            "wo": _w((lambda *s: torch.randn(*s, dtype=torch.bfloat16) * 0.05)(D, D)),
        }
    _A_in = _A_setup()

    def _B_setup():
        B, S, D, F = 1, 2048, 512, 1376
        return {
            "x": _w((lambda *s: torch.randn(*s, dtype=torch.bfloat16) * 0.05)(B, S, D)),
            "w1": _w((lambda *s: torch.randn(*s, dtype=torch.bfloat16) * 0.8)(S, F) * (S ** -0.5)),
            "b1": _w((lambda *s: torch.randn(*s, dtype=torch.bfloat16) * 12.8)(F) * 0.02),
            "w2": _w((lambda *s: torch.randn(*s, dtype=torch.bfloat16) * 0.05)(F, S) * (F ** -0.5)),
            "b2": _w((lambda *s: torch.randn(*s, dtype=torch.bfloat16) * 0.8)(S) * 0.02),
        }
    _B_in = _B_setup()

    return {
        "A_x": _A_in["x"],
        "A_wqkv": _A_in["wqkv"],
        "A_wo": _A_in["wo"],
        "B_x": _B_in["x"],
        "B_w1": _B_in["w1"],
        "B_b1": _B_in["b1"],
        "B_w2": _B_in["w2"],
        "B_b2": _B_in["b2"],
        "gate_w": _w((lambda *s: torch.randn(*s, dtype=torch.bfloat16) * 0.05)(512) * 16.0),
    }

def reference(A_x, A_wqkv, A_wo, B_x, B_w1, B_b1, B_w2, B_b2, gate_w):
    def _A_ref(x, wqkv, wo):
        B, S, D = x.shape
        H = 32; Dh = D // H
        qkv = (lambda x, *d: x.permute(*d))((x @ wqkv).reshape(B, S, 3, H, Dh), 2, 0, 3, 1, 4)
        q, k, v = qkv[0], qkv[1], qkv[2]
        scale = Dh ** -0.5
        scores = torch.einsum("bhqd,bhkd->bhqk", q, k) * scale
        p = _softmax(scores, axis=-1)
        o = torch.einsum("bhqk,bhkd->bhqd", p, v)
        return (lambda x, *d: x.permute(*d))(o, 0, 2, 1, 3).reshape(B, S, D) @ wo

    def _B_ref(x, w1, b1, w2, b2):
        B, S, D = x.shape
        h = _layernorm(x, axis=-1)
        u = torch.einsum("bsd,sf->bdf", h, w1) + b1
        u = _gelu(u)
        y = torch.einsum("bdf,fs->bds", u, w2) + b2
        return (lambda x, *d: x.permute(*d))(y, 0, 2, 1)

    x = A_x
    g = _sigmoid((x * gate_w).sum(-1, keepdims=True))
    a = _A_ref(x, A_wqkv, A_wo)
    b = _B_ref(x, B_w1, B_b1, B_w2, B_b2)
    return g * a + (1 - g) * b
```

```python
class Kern:
    def __init__(self, name, grid, block, lds, nvgpr=128, nsgpr=96):
        self.name = name; self.grid = grid; self.block = block; self.lds = lds
        self.nvgpr = nvgpr; self.nsgpr = nsgpr
        self.lines = []
        self.uid = 0
    def __call__(self, s):
        for ln in s.strip("\n").split("\n"):
            ln = ln.strip()
            if not ln: continue
            if ln.endswith(":") or ln.startswith("."):
                self.lines.append(ln)
            else:
                self.lines.append("    " + ln)
    def lab(self, base):
        self.uid += 1
        return f"L_{self.name[:6]}_{base}_{self.uid}"
    def emit(self, lst):
        for l in lst: self(l)
    def text(self):
        h = f".globl {self.name}\n.p2align 8\n.type {self.name},@function\n{self.name}:\n"
        return h + "\n".join(self.lines) + "\n"
    def desc(self):
        acc = (self.nvgpr + 3) // 4 * 4
        return f""".p2align 6
.amdhsa_kernel {self.name}
  .amdhsa_next_free_vgpr {self.nvgpr}
  .amdhsa_next_free_sgpr {self.nsgpr}
  .amdhsa_accum_offset {acc}
  .amdhsa_group_segment_fixed_size 0
  .amdhsa_kernarg_size 96
  .amdhsa_user_sgpr_count 2
  .amdhsa_user_sgpr_kernarg_segment_ptr 1
  .amdhsa_system_sgpr_workgroup_id_x 1
.end_amdhsa_kernel
"""
    def launch(self):
        return f"; @launch kernel={self.name} grid=({self.grid},1,1) block=({self.block},1,1) lds={self.lds}\n"

def vr(a, n=1):
    return f"v{a}" if n == 1 else f"v[{a}:{a+n-1}]"
def sr(a, n=1):
    return f"s{a}" if n == 1 else f"s[{a}:{a+n-1}]"

def srd(k, d, base, nbytes):
    k(f"s_mov_b32 s{d}, s{base}")
    k(f"s_and_b32 s{d+1}, s{base+1}, 0xffff")
    k(f"s_mov_b32 s{d+2}, {nbytes:#x}")
    k(f"s_mov_b32 s{d+3}, 0x00020000")

HEADER = """; Kernarg layout for this problem (96 bytes, ptrs only, base s[0:1]):
"""
def build(kernels, order=None):
    order = order or kernels
    s = HEADER
    for k in order: s += k.launch()
    s += '.amdgcn_target "amdgcn-amd-amdhsa--gfx950"\n.text\n'
    for k in kernels: s += k.text()
    s += '.section .rodata,"a"\n'
    for k in kernels: s += k.desc()
    return s
```

```python
import sys, math, struct
from asmlib import *

QF = 0x000000
KV = 0x200000
HF = 0x600000
UF = 0x800000
OF = 0xA00000
GF = 0xC00000
WS_BYTES = 0x10000000
UKS = 88

def f32(x): return f"{struct.unpack('<I', struct.pack('<f', x))[0]:#010x}"
LOG2E = 1.4426950408889634

def code_prefetch(k, sw, vt0, vt1, stmp, endlabel):
    skip = k.lab("pfskip"); here = k.lab("pfhere")
    k(f"""
    s_cmp_lg_u32 s{sw}, 0
    s_cbranch_scc1 {skip}
    s_getpc_b64 s[{stmp}:{stmp+1}]
{here}:
    v_and_b32 v{vt0}, 63, v0
    v_lshlrev_b32 v{vt0}, 7, v{vt0}
    v_min_u32 v{vt0}, {endlabel}-{here}-4, v{vt0}
    global_load_dword v{vt1}, v{vt0}, s[{stmp}:{stmp+1}]
{skip}:
""")

def k1():
    k = Kern("qkv_kernel", 256, 256, 163840, nvgpr=128)
    end = "L_qkv_end"
    k(f"""
    s_cmp_ge_u32 s2, 256
    s_cbranch_scc1 {end}
    s_load_dwordx4 s[4:7], s[0:1], 0
    s_load_dwordx2 s[8:9], s[0:1], 88
    s_load_dwordx2 s[10:11], s[0:1], 64
    v_lshrrev_b32 v1, 6, v0
    v_and_b32 v2, 63, v0
    v_readfirstlane_b32 s3, v1
    """)
    code_prefetch(k, 3, 120, 121, 24, end)
    k("s_waitcnt lgkmcnt(0)")
    srd(k, 12, 4, 2048*512*2)
    srd(k, 16, 6, 512*1536*2)
    srd(k, 20, 8, WS_BYTES)
    k(f"""
    s_cmp_ge_u32 s2, 192
    s_cbranch_scc1 L_qkv_ln
    s_and_b32 s24, s2, 7           ; xcd
    s_lshr_b32 s25, s2, 3          ; i 0..23
    s_lshr_b32 s26, s24, 1
    s_lshl_b32 s26, s26, 2
    s_and_b32 s27, s25, 3
    s_add_u32 s26, s26, s27        ; tb 0..15
    s_and_b32 s27, s24, 1
    s_mul_i32 s27, s27, 6
    s_lshr_b32 s28, s25, 2
    s_add_u32 s27, s27, s28        ; nb 0..11
    s_lshl_b32 s28, s26, 17        ; tb*128*1024
    s_lshl_b32 s29, s3, 15         ; w*32*1024
    s_add_u32 s28, s28, s29        ; sXoff
    s_mul_i32 s29, s3, {16*3072}
    s_lshl_b32 s30, s27, 8
    s_add_u32 s29, s29, s30
    s_lshl_b32 s30, s3, 12
    v_lshrrev_b32 v3, 3, v2        ; l>>3
    v_lshlrev_b32 v3, 10, v3
    v_lshrrev_b32 v4, 4, v2        ; l>>4
    v_and_b32 v5, 7, v2
    v_xor_b32 v5, v5, v4
    v_lshl_add_u32 v3, v5, 4, v3   ; vXe
    v_xor_b32 v6, 64, v3           ; vXo
    v_mul_u32_u24 v7, 3072, v4
    v_and_b32 v5, 15, v2
    v_lshlrev_b32 v8, 2, v4
    v_xor_b32 v5, v5, v8
    v_lshl_add_u32 v7, v5, 4, v7   ; vW
    """)
    vXe, vXo, vW = 3, 6, 7
    def dma(s):
        slot = (s % 5) * 32768
        out = []
        for i in range(4):
            out += [f"s_add_u32 m0, s30, {slot + i*1024}",
                    f"s_add_u32 s31, s28, {i*8192 + s*128}",
                    f"buffer_load_dwordx4 v{vXo if i & 1 else vXe}, s[12:15], s31 offen lds"]
            out += [f"s_add_u32 m0, s30, {slot + 16384 + i*1024}",
                    f"s_add_u32 s31, s29, {(s*64 + 4*i)*3072}",
                    f"buffer_load_dwordx4 v{vW}, s[16:19], s31 offen lds"]
        return out
    for s in range(5): k.emit(dma(s))
    vXa = 8
    vWa = 12
    k(f"""
    s_and_b32 s32, s3, 1           ; wm
    s_lshr_b32 s33, s3, 1          ; wn
    v_and_b32 v14, 31, v2          ; l&31
    v_lshrrev_b32 v15, 5, v2       ; hh
    v_lshrrev_b32 v16, 1, v14
    v_and_b32 v16, 7, v16          ; f
    s_lshl_b32 s34, s32, 13        ; wm*64*128
    v_lshl_add_u32 v17, v14, 7, s34
    """)
    for ks in range(4):
        k(f"""
        v_add_u32 v18, {2*ks}, v15
        v_xor_b32 v18, v18, v16
        v_lshl_add_u32 v{vXa+ks}, v18, 4, v17
        """)
    k(f"""
    v_bfe_u32 v16, v2, 2, 2        ; r
    v_lshl_add_u32 v17, v15, 3, v16 ; 8hh + r
    v_lshlrev_b32 v17, 8, v17
    v_bfe_u32 v18, v2, 4, 1
    v_lshl_add_u32 v17, v18, 5, v17
    v_and_b32 v18, 3, v2
    v_lshl_add_u32 v17, v18, 3, v17
    v_add_u32 v17, 16384, v17
    s_lshl_b32 s34, s33, 1         ; 2wn
    v_xor_b32 v18, s34, v16
    v_lshl_add_u32 v{vWa}, v18, 6, v17
    v_xor_b32 v18, 1, v18
    v_lshl_add_u32 v{vWa+1}, v18, 6, v17
    """)
    ACC = 32
    FX = 96
    FW = 112
    for i in range(64): k(f"v_mov_b32 v{ACC+i}, 0")
    def reads(ks, buf):
        out = []
        for g in range(2):
            out.append(f"ds_read_b128 {vr(FX+buf*8+g*4,4)}, v{vXa+ks} offset:{g*4096}")
        for g in range(2):
            for u in range(2):
                out.append(f"ds_read_b64_tr_b16 {vr(FW+buf*8+g*4+u*2,2)}, v{vWa+g} offset:{ks*4096+u*1024}")
        return out
    def mainloop(vtype):
        k("s_waitcnt vmcnt(32)")
        k("s_barrier")
        k.emit(reads(0, 0))
        for s in range(8):
            for ks in range(4):
                buf = ks & 1
                if ks < 3:
                    k.emit(reads(ks+1, buf ^ 1))
                    k("s_waitcnt lgkmcnt(6)")
                elif s < 7:
                    d = 32768 if (s+1) % 5 else -131072
                    for r in range(vXa, vXa+6):
                        k(f"v_add_u32 v{r}, {d & 0xffffffff:#x}, v{r}")
                    issued = min(s+5, 8)
                    k(f"s_waitcnt vmcnt({(issued - (s+2))*8}) lgkmcnt(0)")
                    k("s_barrier")
                    k.emit(reads(0, buf ^ 1))
                    if s + 5 < 8: k.emit(dma(s+5))
                else:
                    k("s_waitcnt lgkmcnt(0)")
                for ci in range(2):
                    for ti in range(2):
                        a = ACC + (ci*2+ti)*16
                        x = vr(FX+buf*8+ti*4, 4); w = vr(FW+buf*8+ci*4, 4)
                        if vtype: k(f"v_mfma_f32_32x32x16_bf16 {vr(a,16)}, {x}, {w}, {vr(a,16)}")
                        else:     k(f"v_mfma_f32_32x32x16_bf16 {vr(a,16)}, {w}, {x}, {vr(a,16)}")
    k(f"""
    s_cmp_ge_u32 s27, 8
    s_cbranch_scc1 L_qkv_vloop
    """)
    mainloop(False)
    k(f"""
    s_cmp_ge_u32 s27, 4
    s_cbranch_scc1 L_qkv_kpar
    s_mov_b32 s40, {QF}
    s_mov_b32 s41, 65536
    s_mov_b32 s42, 1024
    s_mov_b32 s43, 65536
    s_mov_b32 s44, {f32(0.25*LOG2E)}
    v_lshlrev_b32 v20, 4, v2
    s_branch L_qkv_epi
L_qkv_kpar:
    s_mov_b32 s40, {KV}
    s_mov_b32 s41, 131072
    s_mov_b32 s42, 2048
    s_mov_b32 s43, 131072
    s_mov_b32 s44, 1.0
    v_and_b32 v20, 0x33, v2
    v_bfe_u32 v21, v2, 2, 1
    v_lshl_or_b32 v20, v21, 3, v20
    v_bfe_u32 v21, v2, 3, 1
    v_lshl_or_b32 v20, v21, 2, v20
    v_lshlrev_b32 v20, 4, v20
    s_branch L_qkv_epi
L_qkv_vloop:
    """)
    mainloop(True)
    k(f"""
    s_mov_b32 s40, {KV + 1024}
    s_mov_b32 s41, 131072
    s_mov_b32 s42, 2048
    s_mov_b32 s43, 256
    s_mov_b32 s44, 1.0
    v_bfe_u32 v20, v2, 4, 1
    v_lshlrev_b32 v20, 17, v20
    v_lshrrev_b32 v21, 5, v2
    v_lshl_add_u32 v20, v21, 9, v20
    v_and_b32 v21, 15, v2
    v_lshl_add_u32 v20, v21, 4, v20
L_qkv_epi:
    s_and_b32 s45, s27, 3
    s_lshl_b32 s45, s45, 3
    s_lshl_b32 s46, s33, 2
    s_add_u32 s45, s45, s46
    s_mul_i32 s45, s45, s41
    s_add_u32 s40, s40, s45
    s_lshl_b32 s45, s26, 2
    s_lshl_b32 s46, s32, 1
    s_add_u32 s45, s45, s46
    s_mul_i32 s45, s45, s42
    s_add_u32 s40, s40, s45
    s_lshl_b32 s41, s41, 1
    s_nop 4
    """)
    for ci in range(2):
        for ti in range(2):
            a = ACC + (ci*2+ti)*16
            for r in range(16): k(f"v_mul_f32 v{a+r}, s44, v{a+r}")
            for half in range(2):
                d = FX + ((ci*2+ti)*2+half)*4
                for j in range(4):
                    k(f"v_cvt_pk_bf16_f32 v{d+j}, v{a+half*8+2*j}, v{a+half*8+2*j+1}")
                k("s_mov_b32 s45, s40")
                if ci: k("s_add_u32 s45, s45, s41")
                if ti: k("s_add_u32 s45, s45, s42")
                if half: k("s_add_u32 s45, s45, s43")
                k(f"buffer_store_dwordx4 {vr(d,4)}, v20, s[20:23], s45 offen")
    k("s_endpgm")
    XR = 8
    XF = 40
    GW = 104
    RS = 112
    RG = 120
    k("L_qkv_ln:")
    srd(k, 24, 10, 1024)
    k(f"""
    s_sub_u32 s28, s2, 192
    s_lshl_b32 s28, s28, 5
    s_lshl_b32 s29, s3, 3
    s_add_u32 s28, s28, s29        ; T0
    s_lshl_b32 s29, s28, 10
    v_lshlrev_b32 v3, 4, v2
    s_add_u32 s30, s29, 4096
    """)
    for t in range(8):
        k(f"buffer_load_dwordx4 {vr(XR+4*t,4)}, v3, s[12:15], s{29 if t < 4 else 30} offen offset:{(t&3)*1024}")
    k(f"buffer_load_dwordx4 v[4:7], v3, s[24:27], 0 offen")
    k("s_waitcnt vmcnt(0)")
    for j in range(4):
        k(f"v_lshlrev_b32 v{GW+2*j}, 16, v{4+j}")
        k(f"v_and_b32 v{GW+2*j+1}, 0xffff0000, v{4+j}")
    for t in range(8):
        for j in range(4):
            k(f"v_lshlrev_b32 v{XF+8*t+2*j}, 16, v{XR+4*t+j}")
            k(f"v_and_b32 v{XF+8*t+2*j+1}, 0xffff0000, v{XR+4*t+j}")
    for t in range(8):
        k(f"v_add_f32 v{RS+t}, v{XF+8*t}, v{XF+8*t+1}")
        k(f"v_mul_f32 v{RG+t}, v{XF+8*t}, v{GW}")
    for i in range(1, 8):
        for t in range(8):
            if i >= 2: k(f"v_add_f32 v{RS+t}, v{RS+t}, v{XF+8*t+i}")
            k(f"v_fmac_f32 v{RG+t}, v{XF+8*t+i}, v{GW+i}")
    def wave_reduce(regs):
        for ctl in ("row_shr:1", "row_shr:2", "row_shr:4", "row_shr:8"):
            for r in regs: k(f"v_add_f32_dpp v{r}, v{r}, v{r} {ctl} row_mask:0xf bank_mask:0xf bound_ctrl:0")
        for r in regs: k(f"v_add_f32_dpp v{r}, v{r}, v{r} row_bcast:15 row_mask:0xa bank_mask:0xf")
        for r in regs: k(f"v_add_f32_dpp v{r}, v{r}, v{r} row_bcast:31 row_mask:0xc bank_mask:0xf")
    wave_reduce(list(range(RS, RS+16)))
    for t in range(8): k(f"v_mul_f32 v{RS+t}, {f32(1.0/512)}, v{RS+t}")
    for t in range(8): k(f"v_mul_f32 v{RG+t}, {f32(-LOG2E)}, v{RG+t}")
    for t in range(8): k(f"v_readlane_b32 s{40+t}, v{RS+t}, 63")
    for t in range(8): k(f"v_exp_f32 v{RG+t}, v{RG+t}")
    for t in range(8):
        for i in range(8): k(f"v_subrev_f32 v{XF+8*t+i}, s{40+t}, v{XF+8*t+i}")
    for t in range(8): k(f"v_add_f32 v{RG+t}, 1.0, v{RG+t}")
    for t in range(8): k(f"v_rcp_f32 v{RG+t}, v{RG+t}")
    for t in range(8): k(f"v_mul_f32 v{RS+t}, v{XF+8*t}, v{XF+8*t}")
    for i in range(1, 8):
        for t in range(8): k(f"v_fmac_f32 v{RS+t}, v{XF+8*t+i}, v{XF+8*t+i}")
    wave_reduce(list(range(RS, RS+8)))
    k(f"s_mov_b32 s48, {f32(1.0/512)}")
    k(f"v_mov_b32 v4, {f32(1e-5)}")
    for t in range(8): k(f"v_fma_f32 v{RS+t}, v{RS+t}, s48, v4")
    for t in range(8): k(f"v_rsq_f32 v{RS+t}, v{RS+t}")
    k("s_nop 0")
    for t in range(8): k(f"v_readlane_b32 s{40+t}, v{RS+t}, 63")
    k(f"""
    s_lshl_b32 s49, s28, 2
    s_add_u32 s49, s49, {GF}
    v_mov_b32 v5, 0
    s_mov_b64 s[50:51], exec
    s_mov_b32 exec_lo, 0
    s_mov_b32 exec_hi, 0x80000000
    buffer_store_dwordx4 {vr(RG,4)}, v5, s[20:23], s49 offen
    buffer_store_dwordx4 {vr(RG+4,4)}, v5, s[20:23], s49 offen offset:16
    s_mov_b64 exec, s[50:51]
    """)
    for t in range(8):
        for i in range(8): k(f"v_mul_f32 v{XF+8*t+i}, s{40+t}, v{XF+8*t+i}")
    k(f"""
    v_lshrrev_b32 v4, 3, v2
    v_lshlrev_b32 v4, 18, v4
    v_bfe_u32 v5, v2, 2, 1
    v_lshl_add_u32 v4, v5, 10, v4
    v_and_b32 v5, 3, v2
    v_lshl_add_u32 v4, v5, 7, v4
    s_lshr_b32 s49, s28, 4
    s_lshl_b32 s49, s49, 11
    s_bfe_u32 s50, s28, 0x10003
    s_lshl_b32 s50, s50, 9
    s_add_u32 s49, s49, s50
    s_add_u32 s49, s49, {HF}
    """)
    for i in range(8):
        for p in range(4):
            k(f"v_cvt_pk_bf16_f32 v{XR+4*i+p}, v{XF+8*(2*p)+i}, v{XF+8*(2*p+1)+i}")
        k(f"buffer_store_dwordx4 {vr(XR+4*i,4)}, v4, s[20:23], s49 offen offset:{i*16}")
    k(f"{end}:")
    k("s_endpgm")
    return k

def k2():
    k = Kern("attn_kernel", 256, 512, 131072 + 8192, nvgpr=104)
    end = "L_attn_end"
    Q, C, O, S0, S1, KF, V0a, V0b, V1 = 4, 8, 24, 40, 56, 72, 76, 80, 84
    IDX, ADR, G, T0, T1 = 88, 89, 90, 91, 92
    S = [S0, S1]; V0 = [V0a, V0b]
    k(f"""
    s_cmp_ge_u32 s2, 256
    s_cbranch_scc1 {end}
    s_load_dwordx2 s[8:9], s[0:1], 88
    v_lshrrev_b32 v1, 6, v0
    v_and_b32 v2, 63, v0
    v_readfirstlane_b32 s3, v1
    """)
    code_prefetch(k, 3, 100, 101, 24, end)
    k(f"""
    s_and_b32 s24, s2, 7
    s_lshr_b32 s25, s2, 3
    s_lshl_b32 s26, s24, 2
    s_lshr_b32 s27, s25, 3
    s_add_u32 s26, s26, s27        ; head
    s_and_b32 s27, s25, 7          ; qb
    s_lshl_b32 s27, s27, 3
    s_add_u32 s27, s27, s3         ; qtile
    v_lshlrev_b32 v{ADR}, 4, v2
    s_lshl_b32 s28, s26, 17
    s_lshl_b32 s29, s3, 11         ; w*2048
    s_add_u32 s28, s28, s29
    s_add_u32 s28, s28, {KV}
    s_lshl_b32 s30, s26, 16
    s_lshl_b32 s31, s27, 10
    s_add_u32 s30, s30, s31
    v_and_b32 v{T0}, 31, v2
    v_lshlrev_b32 v{T0}, 2, v{T0}
    s_lshl_b32 s31, s27, 7
    s_add_u32 s31, s31, {GF}
    s_waitcnt lgkmcnt(0)
    """)
    srd(k, 20, 8, WS_BYTES)
    k(f"buffer_load_dwordx4 {vr(Q,4)}, v{ADR}, s[20:23], s30 offen")
    for c in range(8):
        k(f"s_add_u32 m0, s29, {c*16384}")
        k(f"s_add_u32 s32, s28, {c*16384}")
        k(f"buffer_load_dwordx4 v{ADR}, s[20:23], s32 offen lds")
        k(f"buffer_load_dwordx4 v{ADR}, s[20:23], s32 offen offset:1024 lds")
    k(f"buffer_load_dword v{G}, v{T0}, s[20:23], s31 offen")
    k(f"v_mov_b32 v{IDX}, 0xdddddddd")
    for r in list(range(V0a, V0a+12)): k(f"v_mov_b32 v{r}, 0x3f803f80")
    k(f"""
    s_mov_b32 s34, 0x0000ffff
    s_mov_b32 s35, 0x0000ffff
    s_mov_b32 s36, 0
    s_waitcnt vmcnt(15)
    s_barrier
    ds_read_b128 {vr(KF,4)}, v{ADR}
    s_waitcnt lgkmcnt(0)
    v_mfma_f32_32x32x16_bf16 {vr(S0,16)}, {vr(KF,4)}, {vr(Q,4)}, 0
    s_nop 15
    v_max3_f32 v{T0}, v{S0}, v{S0+1}, v{S0+2}
    """)
    for j in range(3, 15, 2): k(f"v_max3_f32 v{T0}, v{T0}, v{S0+j}, v{S0+j+1}")
    k(f"v_max_f32 v{T0}, v{T0}, v{S0+15}")
    k("L_attn_setmax:")
    k(f"""
    v_mov_b32 v{T1}, v{T0}
    s_nop 1
    v_permlane32_swap_b32 v{T0}, v{T1}
    s_nop 1
    v_max_f32 v{T0}, v{T0}, v{T1}
    v_lshlrev_b32 v{ADR}, 4, v2
    """)
    for r in range(16): k(f"v_sub_f32 v{C+r}, 0, v{T0}")
    for r in range(16): k(f"v_mov_b32 v{O+r}, 0")
    for r in range(8): k(f"v_mov_b32 v{S1+8+r}, 0")
    k(f"""
    ds_read_b128 {vr(KF,4)}, v{ADR}
    s_mov_b64 exec, s[34:35]
    ds_read_b128 {vr(V0a,4)}, v{ADR} offset:1024
    s_mov_b64 exec, -1
    s_waitcnt lgkmcnt(1)
    v_mfma_f32_32x32x16_bf16 {vr(S0,16)}, {vr(KF,4)}, {vr(Q,4)}, {vr(C,16)}
    ds_read_b128 {vr(KF,4)}, v{ADR} offset:2048
    s_mov_b32 s33, 0
    s_nop 10
    """)
    k(".p2align 6")
    k("L_attn_loop:")
    for t in range(8):
        cur = S[t & 1]; prv = S[(t+1) & 1]
        e = lambda a, b: [f"v_exp_f32 v{cur+i}, v{cur+i}" for i in range(a, b)]
        k.emit(e(0, 2))
        k("s_waitcnt lgkmcnt(2)")
        k(f"v_smfmac_f32_32x32x32_bf16 {vr(O,16)}, {vr(V1,4)}, {vr(prv+8,8)}, v{IDX}")
        k("s_mov_b64 exec, s[34:35]")
        k(f"ds_read_b128 {vr(V1,4)}, v{ADR} offset:{t*2048+1024+256}")
        k(f"ds_read_b128 {vr(V0[(t+1)&1],4)}, v{ADR} offset:{(t+1)*2048+1024}")
        k("s_mov_b64 exec, -1")
        k.emit(e(2, 7))
        k("s_waitcnt lgkmcnt(2)")
        k(f"v_mfma_f32_32x32x16_bf16 {vr(prv,16)}, {vr(KF,4)}, {vr(Q,4)}, {vr(C,16)}")
        k(f"ds_read_b128 {vr(KF,4)}, v{ADR} offset:{(t+2)*2048}")
        k.emit(e(7, 12))
        k(f"v_smfmac_f32_32x32x32_bf16 {vr(O,16)}, {vr(V0[t&1],4)}, {vr(cur,8)}, v{IDX}")
        k.emit(e(12, 16))
        if t == 4:
            k(f"""
            s_cmp_lg_u32 s33, 0
            s_cbranch_scc1 L_attn_nosync
            s_cmp_lg_u32 s36, 0
            s_cbranch_scc1 L_attn_nosync
            s_waitcnt vmcnt(0)
            s_barrier
L_attn_nosync:
            """)
        else:
            k("s_nop 0")
    k(f"""
    v_add_u32 v{ADR}, 16384, v{ADR}
    s_add_u32 s33, s33, 1
    s_cmp_lt_u32 s33, 8
    s_cbranch_scc1 L_attn_loop
    s_waitcnt lgkmcnt(0)
    v_smfmac_f32_32x32x32_bf16 {vr(O,16)}, {vr(V1,4)}, {vr(S1+8,8)}, v{IDX}
    s_nop 15
    s_cmp_lg_u32 s36, 0
    s_cbranch_scc1 L_attn_fin
    v_max3_f32 v{T0}, abs(v{O}), abs(v{O+1}), abs(v{O+2})
    v_max3_f32 v{T0}, v{T0}, abs(v{O+3}), abs(v{O+4})
    v_max3_f32 v{T0}, v{T0}, abs(v{O+5}), abs(v{O+6})
    v_max_f32 v{T0}, v{T0}, abs(v{O+7})
    v_add_f32 v{T1}, v{O}, v{O+1}
    v_add_f32 v{T1}, v{T1}, v{O+2}
    v_add_f32 v{T1}, v{T1}, v{O+3}
    v_add_f32 v{T1}, v{T1}, v{O+4}
    v_add_f32 v{T1}, v{T1}, v{O+5}
    v_add_f32 v{T1}, v{T1}, v{O+6}
    v_add_f32 v{T1}, v{T1}, v{O+7}
    s_mov_b32 s38, {f32(2.0**40)}
    s_mov_b32 s39, {f32(2.0**120)}
    v_cmp_gt_f32 vcc, s38, v{O+8}
    v_cmp_gt_f32 s[40:41], s39, v{T0}
    v_cmp_o_f32 s[42:43], v{T1}, v{T1}
    s_and_b64 vcc, vcc, s[40:41]
    s_and_b64 vcc, vcc, s[42:43]
    s_cmp_eq_u64 vcc, exec
    s_cbranch_scc1 L_attn_fin
    s_mov_b32 s36, 1
    v_lshlrev_b32 v{ADR}, 4, v2
    v_mov_b32 v{T0}, 0xff800000
    s_mov_b32 s33, 0
L_attn_maxloop:
    ds_read_b128 {vr(KF,4)}, v{ADR}
    s_waitcnt lgkmcnt(0)
    v_mfma_f32_32x32x16_bf16 {vr(S0,16)}, {vr(KF,4)}, {vr(Q,4)}, 0
    v_add_u32 v{ADR}, 2048, v{ADR}
    s_nop 15
    """)
    for j in range(0, 16, 2): k(f"v_max3_f32 v{T0}, v{T0}, v{S0+j}, v{S0+j+1}")
    k(f"""
    s_add_u32 s33, s33, 1
    s_cmp_lt_u32 s33, 64
    s_cbranch_scc1 L_attn_maxloop
    s_branch L_attn_setmax
L_attn_fin:
    v_rcp_f32 v{T0}, v{O+8}
    s_lshr_b32 s30, s27, 1
    s_lshl_b32 s30, s30, 16
    s_lshl_b32 s31, s26, 11
    s_add_u32 s30, s30, s31
    s_and_b32 s31, s27, 1
    s_lshl_b32 s31, s31, 10
    s_add_u32 s30, s30, s31
    s_add_u32 s30, s30, {OF}
    v_mul_f32 v{T0}, v{T0}, v{G}
    v_lshlrev_b32 v{ADR}, 4, v2
    """)
    for r in range(8): k(f"v_mul_f32 v{O+r}, v{O+r}, v{T0}")
    for j in range(4): k(f"v_cvt_pk_bf16_f32 v{KF+j}, v{O+2*j}, v{O+2*j+1}")
    k(f"buffer_store_dwordx4 {vr(KF,4)}, v{ADR}, s[20:23], s30 offen")
    k(f"{end}:")
    k("s_endpgm")
    return k

class MG:
    D = 8
    ACC = 16
    FO = 80
    RF = 144
    vLane16 = 3; vDma = 4; vTr = 5
def mg_setup(k, pitch_s, korder_sigma):
    k(f"""
    v_lshlrev_b32 v{MG.vLane16}, 4, v2
    v_lshrrev_b32 v8, 3, v2            ; row 0..7
    v_mul_lo_u32 v{MG.vDma}, v8, s{pitch_s}
    v_bfe_u32 v9, v2, 4, 1             ; (row>>1)&1
    v_lshlrev_b32 v9, 2, v9
    v_and_b32 v10, 7, v2
    v_xor_b32 v9, v9, v10
    v_lshl_add_u32 v{MG.vDma}, v9, 4, v{MG.vDma}
    v_bfe_u32 v8, v2, 2, 2             ; r
    v_lshrrev_b32 v9, 5, v2            ; hh
    v_lshl_add_u32 v9, v9, {2 if korder_sigma else 3}, v8
    v_lshlrev_b32 v9, 7, v9            ; row*128
    v_bfe_u32 v10, v2, 4, 1
    v_lshl_add_u32 v9, v10, 5, v9
    v_and_b32 v10, 3, v2
    v_lshl_add_u32 v9, v10, 3, v9
    v_add_u32 v9, s30, v9
    v_lshrrev_b32 v10, 1, v8           ; r>>1
    v_lshl_add_u32 v{MG.vTr}, v10, 6, v9
    v_xor_b32 v{MG.vTr+1}, 64, v{MG.vTr}
    """)
def mg_segment(k, nsteps, ring_srd, s_ring, pitch, s_fo, ring_is_A, korder_sigma):
    D = MG.D
    ustep = 1024 if korder_sigma else 512
    def loads(slot):
        return [f"s_add_u32 m0, s30, {slot*2048}",
                f"s_add_u32 s31, s{s_ring}, {8*pitch}",
                f"buffer_load_dwordx4 v{MG.vDma}, s[{ring_srd}:{ring_srd+3}], s{s_ring} offen lds",
                f"s_add_u32 m0, s30, {slot*2048+1024}",
                f"s_add_u32 s{s_ring}, s{s_ring}, {16*pitch}",
                f"buffer_load_dwordx4 v{MG.vDma}, s[{ring_srd}:{ring_srd+3}], s31 offen lds",
                f"buffer_load_dwordx4 {vr(MG.FO+slot*8,4)}, v{MG.vLane16}, s[20:23], s{s_fo} offen",
                f"buffer_load_dwordx4 {vr(MG.FO+slot*8+4,4)}, v{MG.vLane16}, s[20:23], s{s_fo} offen offset:1024",
                f"s_add_u32 s{s_fo}, s{s_fo}, 2048"]
    def trs(slot, buf):
        return [f"ds_read_b64_tr_b16 {vr(MG.RF+buf*8+g*4+u*2,2)}, v{MG.vTr+g} offset:{slot*2048+u*ustep}" for g in range(2) for u in range(2)]
    def mfmas(slot, buf):
        out = []
        for mi in range(2):
            for ni in range(2):
                a = MG.ACC + (mi*2+ni)*16
                if ring_is_A: A = vr(MG.RF+buf*8+mi*4, 4); B = vr(MG.FO+slot*8+ni*4, 4)
                else:         A = vr(MG.FO+slot*8+mi*4, 4); B = vr(MG.RF+buf*8+ni*4, 4)
                out.append(f"v_mfma_f32_32x32x16_bf16 {vr(a,16)}, {A}, {B}, {vr(a,16)}")
        return out
    for i in range(min(D, nsteps)): k.emit(loads(i))
    def vm_after(i):
        return None
    issued = min(D, nsteps)
    k(f"s_waitcnt vmcnt({(issued-1)*4})")
    k.emit(trs(0, 0))
    for i in range(nsteps):
        slot = i % D; buf = i & 1
        if i + 1 < nsteps:
            k(f"s_waitcnt vmcnt({(issued-(i+2))*4})")
            k.emit(trs((i+1) % D, buf ^ 1))
            k("s_waitcnt lgkmcnt(4)")
        else:
            k("s_waitcnt lgkmcnt(0)")
        k.emit(mfmas(slot, buf))
        if issued < nsteps:
            k.emit(loads(slot)); issued += 1

def mg_reduce(k):
    A = MG.ACC
    k("s_nop 15")
    k("s_barrier")
    k(f"s_lshl_b32 s31, s3, 12")
    k(f"v_add_u32 v8, s31, v{MG.vLane16}")
    for t in range(4):
        for q in range(4):
            k(f"ds_write_b128 v8, {vr(A+t*16+q*4,4)} offset:{t*16384+q*1024}")
    k(f"s_lshl_b32 s31, s3, 14")
    k(f"v_add_u32 v8, s31, v{MG.vLane16}")
    k("s_waitcnt lgkmcnt(0)")
    k("s_barrier")
    for w in range(4):
        for q in range(4):
            k(f"ds_read_b128 {vr(A+w*16+q*4,4)}, v8 offset:{w*4096+q*1024}")
        if w == 2: k("s_waitcnt lgkmcnt(4)")
    k("s_waitcnt lgkmcnt(0)")
    for r in range(16): k(f"v_add_f32 v{A+r}, v{A+r}, v{A+16+r}")
    for r in range(16): k(f"v_add_f32 v{A+32+r}, v{A+32+r}, v{A+48+r}")
    for r in range(16): k(f"v_add_f32 v{A+r}, v{A+r}, v{A+32+r}")

def k3():
    k = Kern("mlp1_kernel", 176, 256, 65536, nvgpr=168)
    end = "L_mlp1_end"
    A = MG.ACC
    k(f"""
    s_cmp_ge_u32 s2, 176
    s_cbranch_scc1 {end}
    s_load_dwordx4 s[4:7], s[0:1], 32
    s_load_dwordx2 s[8:9], s[0:1], 88
    v_lshrrev_b32 v1, 6, v0
    v_and_b32 v2, 63, v0
    v_readfirstlane_b32 s3, v1
    """)
    code_prefetch(k, 3, 160, 161, 24, end)
    k(f"""
    s_and_b32 s24, s2, 7
    s_lshr_b32 s25, s2, 3
    s_mul_i32 s24, s24, 22
    s_add_u32 s24, s24, s25
    s_lshr_b32 s26, s24, 3         ; ft
    s_and_b32 s27, s24, 7          ; dt
    s_lshl_b32 s30, s3, 14
    s_mov_b32 s33, 2752
    s_mul_i32 s28, s3, {512*2752}
    s_lshl_b32 s31, s26, 7
    s_add_u32 s28, s28, s31        ; w1 offset
    s_lshl_b32 s29, s27, 18
    s_lshl_b32 s31, s3, 16
    s_add_u32 s29, s29, s31
    s_add_u32 s29, s29, {HF}
    """)
    mg_setup(k, 33, False)
    k("s_waitcnt lgkmcnt(0)")
    srd(k, 12, 4, 2048*1376*2)
    srd(k, 16, 6, 1376*2)
    srd(k, 20, 8, WS_BYTES)
    k(f"""
    s_lshr_b32 s34, s3, 1
    s_lshl_b32 s34, s34, 6
    s_lshl_b32 s35, s26, 7
    s_add_u32 s34, s34, s35
    v_lshrrev_b32 v8, 5, v2
    v_lshlrev_b32 v8, 3, v8
    """)
    for q in range(4): k(f"buffer_load_dwordx2 {vr(160+2*q,2)}, v8, s[16:19], s34 offen offset:{q*16}")
    for i in range(64): k(f"v_mov_b32 v{A+i}, 0")
    mg_segment(k, 32, 12, 28, 2752, 29, True, False)
    mg_reduce(k)
    B = A + 16; T = A + 32
    for q in range(4):
        for j in range(2):
            k(f"v_lshlrev_b32 v{B+4*q+2*j}, 16, v{160+2*q+j}")
            k(f"v_and_b32 v{B+4*q+2*j+1}, 0xffff0000, v{160+2*q+j}")
    c0 = math.sqrt(2/math.pi)
    k(f"s_mov_b32 s36, {f32(-2*LOG2E*c0*0.044715)}")
    k(f"v_mov_b32 v9, {f32(-2*LOG2E*c0)}")
    for r in range(16): k(f"v_add_f32 v{A+r}, v{A+r}, v{B+r}")
    for r in range(16): k(f"v_mul_f32 v{T+r}, v{A+r}, v{A+r}")
    for r in range(16): k(f"v_fma_f32 v{T+r}, v{T+r}, s36, v9")
    for r in range(16): k(f"v_mul_f32 v{T+r}, v{T+r}, v{A+r}")
    for r in range(16): k(f"v_exp_f32 v{T+r}, v{T+r}")
    for r in range(16): k(f"v_add_f32 v{T+r}, 1.0, v{T+r}")
    for r in range(16): k(f"v_rcp_f32 v{T+r}, v{T+r}")
    for r in range(16): k(f"v_mul_f32 v{A+r}, v{A+r}, v{T+r}")
    for j in range(8): k(f"v_cvt_pk_bf16_f32 v{B+j}, v{A+2*j}, v{A+2*j+1}")
    k(f"""
    s_mul_i32 s34, s27, {UKS*2048}
    s_lshl_b32 s35, s26, 13        ; ft*4*2048
    s_add_u32 s34, s34, s35
    s_lshr_b32 s35, s3, 1
    s_lshl_b32 s35, s35, 12        ; fi*2*2048
    s_add_u32 s34, s34, s35
    s_and_b32 s35, s3, 1
    s_lshl_b32 s35, s35, 10
    s_add_u32 s34, s34, s35
    s_add_u32 s34, s34, {UF}
    buffer_store_dwordx4 {vr(B,4)}, v{MG.vLane16}, s[20:23], s34 offen
    buffer_store_dwordx4 {vr(B+4,4)}, v{MG.vLane16}, s[20:23], s34 offen offset:2048
{end}:
    s_endpgm
    """)
    return k

def k4():
    k = Kern("fin_kernel", 256, 256, 65536, nvgpr=168)
    end = "L_fin_end"
    A = MG.ACC
    k(f"""
    s_cmp_ge_u32 s2, 256
    s_cbranch_scc1 {end}
    s_load_dwordx4 s[4:7], s[0:1], 48      ; w2, b2
    s_load_dwordx2 s[8:9], s[0:1], 88
    s_load_dwordx2 s[10:11], s[0:1], 16    ; wo
    s_load_dwordx2 s[40:41], s[0:1], 72    ; out
    v_lshrrev_b32 v1, 6, v0
    v_and_b32 v2, 63, v0
    v_readfirstlane_b32 s3, v1
    """)
    code_prefetch(k, 3, 160, 161, 24, end)
    k(f"""
    s_and_b32 s24, s2, 7
    s_lshr_b32 s25, s2, 3
    s_lshl_b32 s26, s24, 2
    s_lshr_b32 s27, s25, 3
    s_add_u32 s26, s26, s27        ; st
    s_and_b32 s27, s25, 7          ; dt
    s_lshl_b32 s30, s3, 14
    s_mov_b32 s33, 4096
    s_mul_i32 s28, s3, {22*16*4096}
    s_lshl_b32 s31, s26, 7
    s_add_u32 s28, s28, s31        ; w2 offset
    s_mul_i32 s29, s27, {UKS*2048}
    s_mul_i32 s31, s3, {22*2048}
    s_add_u32 s29, s29, s31
    s_add_u32 s29, s29, {UF}
    """)
    mg_setup(k, 33, True)
    k("s_waitcnt lgkmcnt(0)")
    srd(k, 12, 4, 1376*2048*2)
    srd(k, 16, 6, 2048*2)
    srd(k, 20, 8, WS_BYTES)
    srd(k, 36, 10, 512*512*2)
    srd(k, 44, 40, 2048*512*2)
    k(f"""
    v_and_b32 v8, 31, v2
    v_lshlrev_b32 v9, 2, v8
    v_lshlrev_b32 v8, 1, v8
    s_lshl_b32 s34, s26, 8
    s_add_u32 s34, s34, {GF}
    buffer_load_dword v160, v9, s[20:23], s34 offen
    buffer_load_dword v161, v9, s[20:23], s34 offen offset:128
    s_lshl_b32 s34, s26, 7
    s_and_b32 s35, s3, 1
    s_lshl_b32 s35, s35, 6
    s_add_u32 s34, s34, s35
    buffer_load_ushort v162, v8, s[16:19], s34 offen
    """)
    for i in range(64): k(f"v_mov_b32 v{A+i}, 0")
    mg_segment(k, 22, 12, 28, 4096, 29, False, True)
    k(f"""
    v_sub_f32 v160, 1.0, v160
    v_sub_f32 v161, 1.0, v161
    v_lshrrev_b32 v8, 3, v2
    v_mul_u32_u24 v9, 3072, v8
    v_sub_u32 v{MG.vDma}, v{MG.vDma}, v9   ; pitch 4096 -> 1024
    s_lshl_b32 s28, s3, 17         ; w*128 rows*1024
    s_lshl_b32 s31, s27, 7
    s_add_u32 s28, s28, s31
    s_lshl_b32 s29, s26, 16
    s_lshl_b32 s31, s3, 14
    s_add_u32 s29, s29, s31
    s_add_u32 s29, s29, {OF}
    s_nop 8
    """)
    for mi in range(2):
        for ni in range(2):
            for r in range(16):
                a = A + (mi*2+ni)*16 + r
                k(f"v_mul_f32 v{a}, v{a}, v{160+ni}")
    mg_segment(k, 8, 36, 28, 1024, 29, True, True)
    mg_reduce(k)
    k(f"""
    s_and_b32 s35, s3, 1
    s_cmp_eq_u32 s35, 0
    s_cselect_b64 vcc, -1, 0
    v_lshlrev_b32 v162, 16, v162
    v_cndmask_b32 v160, v161, v160, vcc
    v_mul_f32 v162, v162, v160
    """)
    for r in range(16): k(f"v_add_f32 v{A+r}, v{A+r}, v162")
    B = A + 16
    for j in range(8): k(f"v_cvt_pk_bf16_f32 v{B+j}, v{A+2*j}, v{A+2*j+1}")
    k(f"""
    v_and_b32 v8, 31, v2
    v_lshlrev_b32 v8, 10, v8
    v_lshrrev_b32 v9, 5, v2
    v_lshl_add_u32 v8, v9, 4, v8
    s_lshl_b32 s34, s26, 16        ; st*64*1024
    s_lshl_b32 s35, s35, 15        ; si*32*1024
    s_add_u32 s34, s34, s35
    s_lshl_b32 s35, s27, 7
    s_add_u32 s34, s34, s35
    s_lshr_b32 s35, s3, 1
    s_lshl_b32 s35, s35, 6
    s_add_u32 s34, s34, s35
    v_permlane32_swap_b32 v{B}, v{B+2}
    v_permlane32_swap_b32 v{B+1}, v{B+3}
    v_permlane32_swap_b32 v{B+4}, v{B+6}
    v_permlane32_swap_b32 v{B+5}, v{B+7}
    s_nop 1
    buffer_store_dwordx4 {vr(B,4)}, v8, s[44:47], s34 offen
    buffer_store_dwordx4 {vr(B+4,4)}, v8, s[44:47], s34 offen offset:32
{end}:
    s_endpgm
    """)
    return k

if __name__ == "__main__":
    ks = [k1(), k2(), k3(), k4()]
    out = sys.argv[1] if len(sys.argv) > 1 else "gated_mix__softmax_full_mha__mixer_token_mlp__prompt.s"
    open(out, "w").write(build(ks))
```

```python
import sys, math, struct, os
from asmlib import *

QF = 0x000000
KV = 0x200000
HF = 0x600000
UF = 0x800000
OF = 0xA00000
GF = 0xC00000
FLG = 0xC10000
BP = 0x1000000
TS = 0xE00000
WS_BYTES = 0x10000000
UKS = 88
def f32(x): return f"{struct.unpack('<I', struct.pack('<f', x))[0]:#010x}"
LOG2E = 1.4426950408889634
STAMP = bool(os.environ.get("STAMP"))
OPT = os.environ.get("OPT", "")
ST1 = " sc1" if "w" in OPT else ""
ST2 = " sc1" if "W" in OPT else ""

def stamp(k, i):
    if not STAMP: return
    k(f"""
    s_memrealtime s[92:93]
    s_memtime s[94:95]
    s_waitcnt lgkmcnt(0)
    s_mov_b32 s{64+2*i}, s92
    s_mov_b32 s{65+2*i}, s94
    """)
def stamp_flush(k, kidx, n):
    if not STAMP: return
    k("s_waitcnt vmcnt(0)")
    stamp(k, n)
    k(f"""
    s_lshl_b32 s92, s2, 10
    s_lshl_b32 s93, s3, 6
    s_add_u32 s92, s92, s93
    s_add_u32 s92, s92, {TS + kidx*0x40000}
    s_mov_b64 exec, 1
    v_mov_b32 v1, 0
    """)
    for i in range(2*n+2):
        k(f"v_mov_b32 v0, s{64+i}")
        k(f"buffer_store_dword v0, v1, s[20:23], s92 offen offset:{4*i}")

def code_prefetch(k, vt0, vt1, stmp, endlabel, n=1):
    here = k.lab("pfhere")
    k(f"s_getpc_b64 s[{stmp}:{stmp+1}]")
    k(f"{here}:")
    for i in range(n):
        k(f"""
        v_lshlrev_b32 v{vt0}, 7, v2
        v_add_u32 v{vt0}, {i*8192}, v{vt0}
        v_min_u32 v{vt0}, {endlabel}-{here}-4, v{vt0}
        global_load_dword v{vt1}, v{vt0}, s[{stmp}:{stmp+1}]
        """)

def entry(k, nwg, end, loads):
    k(f"""
    s_cmp_ge_u32 s2, {nwg}
    s_cbranch_scc1 {end}
    """)
    k(loads)
    k("""
    v_lshrrev_b32 v1, 6, v0
    v_and_b32 v2, 63, v0
    v_readfirstlane_b32 s3, v1
    """)
    stamp(k, 0)

def k1():
    k = Kern("qkv_kernel", 256, 512, 131072, nvgpr=128)
    end = "L_qkv_end"
    entry(k, 256, end, """
    s_load_dwordx4 s[4:7], s[0:1], 0
    s_load_dwordx2 s[8:9], s[0:1], 88
    s_load_dwordx2 s[10:11], s[0:1], 64
    """)
    k(f"""
    s_and_b32 s24, s2, 7           ; xcd
    s_lshr_b32 s25, s2, 3          ; i 0..23
    s_lshr_b32 s26, s24, 1
    s_lshl_b32 s26, s26, 2
    s_and_b32 s34, s25, 3
    s_add_u32 s26, s26, s34        ; tb 0..15
    s_and_b32 s27, s24, 1
    s_mul_i32 s27, s27, 6
    s_lshr_b32 s35, s25, 2
    s_add_u32 s27, s27, s35        ; nb 0..11
    s_waitcnt lgkmcnt(0)
    """)
    srd(k, 12, 4, 2048*512*2)
    srd(k, 16, 6, 512*1536*2)
    srd(k, 20, 8, WS_BYTES)
    k(f"""
    s_cmp_ge_u32 s2, 192
    s_cbranch_scc1 L_qkv_ln
    s_cmp_lt_u32 s3, 4
    s_cbranch_scc1 L_qkv_comp
    s_sub_u32 s33, s3, 4           ; lw
    s_lshl_b32 s28, s26, 17
    s_lshl_b32 s29, s33, 15
    s_add_u32 s28, s28, s29
    s_mul_i32 s29, s33, {16*3072}
    s_lshl_b32 s30, s27, 8
    s_add_u32 s29, s29, s30        ; sWoff
    s_lshl_b32 s30, s33, 12
    v_lshrrev_b32 v3, 3, v2
    v_lshlrev_b32 v3, 10, v3
    v_lshrrev_b32 v4, 4, v2
    v_and_b32 v5, 7, v2
    v_xor_b32 v5, v5, v4
    v_lshl_add_u32 v3, v5, 4, v3   ; vXe
    v_xor_b32 v6, 64, v3           ; vXo
    v_mul_u32_u24 v7, 3072, v4
    v_and_b32 v5, 15, v2
    v_lshlrev_b32 v8, 2, v4
    v_xor_b32 v5, v5, v8
    v_lshl_add_u32 v7, v5, 4, v7   ; vW
    s_lshl_b32 s36, s34, 1
    s_add_u32 s36, s36, s35        ; rotation
    s_and_b32 s36, s36, {0 if 'r' in OPT else 7}
    s_mov_b32 s37, 0               ; j
L_qkv_ld:
    s_cmp_lt_u32 s37, 2
    s_cbranch_scc1 L_qkv_ld_issue
    s_cmp_eq_u32 s37, 3
    s_cbranch_scc1 L_qkv_ld_issue
    s_cmp_eq_u32 s37, 2
    s_cbranch_scc0 L_qkv_ld_w16
    s_waitcnt vmcnt(8)
L_qkv_ld_w16:
    s_waitcnt vmcnt(16)
    s_barrier
L_qkv_ld_issue:
    s_lshl_b32 s38, s36, 7
    s_add_u32 s38, s38, s28
    s_mul_i32 s39, s36, {64*3072}
    s_add_u32 s39, s39, s29
    """)
    for i in range(4):
        k(f"""
        s_add_u32 m0, s30, {i*1024}
        s_add_u32 s31, s38, {i*8192}
        buffer_load_dwordx4 v{6 if i & 1 else 3}, s[12:15], s31 offen lds
        s_add_u32 m0, s30, {16384 + i*1024}
        s_add_u32 s31, s39, {4*i*3072}
        buffer_load_dwordx4 v7, s[16:19], s31 offen lds
        """)
    k(f"""
    s_add_u32 s30, s30, 32768
    s_and_b32 s30, s30, 0x1ffff
    s_add_u32 s36, s36, 1
    s_and_b32 s36, s36, 7
    s_add_u32 s37, s37, 1
    s_cmp_lt_u32 s37, 8
    s_cbranch_scc1 L_qkv_ld
    s_waitcnt vmcnt(16)
    s_barrier
    s_waitcnt vmcnt(8)
    s_barrier
    s_waitcnt vmcnt(0)
    s_barrier
    s_endpgm
L_qkv_comp:
    s_cmp_lg_u32 s3, 0
    s_cbranch_scc1 L_qkv_nopf
    """)
    code_prefetch(k, 22, 23, 40, "L_qkv_ln")
    k("L_qkv_nopf:")
    vXa = 8; vWa = 12
    k(f"""
    s_and_b32 s32, s3, 1           ; wm
    s_lshr_b32 s33, s3, 1          ; wn
    v_and_b32 v14, 31, v2
    v_lshrrev_b32 v15, 5, v2       ; hh
    v_lshrrev_b32 v16, 1, v14
    v_and_b32 v16, 7, v16
    s_lshl_b32 s34, s32, 13
    v_lshl_add_u32 v17, v14, 7, s34
    """)
    for ks in range(4):
        k(f"""
        v_add_u32 v18, {2*ks}, v15
        v_xor_b32 v18, v18, v16
        v_lshl_add_u32 v{vXa+ks}, v18, 4, v17
        """)
    k(f"""
    v_bfe_u32 v16, v2, 2, 2
    v_lshl_add_u32 v17, v15, 3, v16
    v_lshlrev_b32 v17, 8, v17
    v_bfe_u32 v18, v2, 4, 1
    v_lshl_add_u32 v17, v18, 5, v17
    v_and_b32 v18, 3, v2
    v_lshl_add_u32 v17, v18, 3, v17
    v_add_u32 v17, 16384, v17
    s_lshl_b32 s34, s33, 1
    v_xor_b32 v18, s34, v16
    v_lshl_add_u32 v{vWa}, v18, 6, v17
    v_xor_b32 v18, 1, v18
    v_lshl_add_u32 v{vWa+1}, v18, 6, v17
    """)
    ACC = 32; FX = 96; FW = 112
    for i in range(64): k(f"v_mov_b32 v{ACC+i}, 0")
    def reads(sl, ks, buf):
        out = []
        for g in range(2):
            out.append(f"ds_read_b128 {vr(FX+buf*8+g*4,4)}, v{vXa+ks} offset:{sl*32768+g*4096}")
        for g in range(2):
            for u in range(2):
                out.append(f"ds_read_b64_tr_b16 {vr(FW+buf*8+g*4+u*2,2)}, v{vWa+g} offset:{sl*32768+ks*4096+u*1024}")
        return out
    def mainloop(vtype):
        nm = "v" if vtype else "q"
        stamp(k, 1)
        k("s_barrier")
        stamp(k, 2)
        k.emit(reads(0, 0, 0))
        k("s_mov_b32 s37, 0")
        k(".p2align 3")
        k(f"L_qkv_loop{nm}:")
        for sl in range(2):
            for ks in range(4):
                buf = ks & 1
                def mf():
                    for ci in range(2):
                        for ti in range(2):
                            a = ACC + (ci*2+ti)*16
                            x = vr(FX+buf*8+ti*4, 4); w = vr(FW+buf*8+ci*4, 4)
                            if vtype: k(f"v_mfma_f32_32x32x16_bf16 {vr(a,16)}, {x}, {w}, {vr(a,16)}")
                            else:     k(f"v_mfma_f32_32x32x16_bf16 {vr(a,16)}, {w}, {x}, {vr(a,16)}")
                if ks < 3:
                    k.emit(reads(sl, ks+1, buf ^ 1))
                    k("s_waitcnt lgkmcnt(6)")
                    k("s_nop 0")
                    mf()
                elif sl == 0:
                    k("s_waitcnt lgkmcnt(0)")
                    k("s_barrier")
                    k.emit(reads(1, 0, buf ^ 1))
                    mf()
                else:
                    for r in range(vXa, vXa+6): k(f"v_xor_b32 v{r}, 0x10000, v{r}")
                    k(f"""
                    s_add_u32 s37, s37, 1
                    s_cmp_ge_u32 s37, 4
                    s_waitcnt lgkmcnt(0)
                    s_cbranch_scc1 L_qkv_last{nm}
                    s_barrier
                    s_nop 0
                    """)
                    k.emit(reads(0, 0, buf ^ 1))
                    mf()
                    k(f"s_branch L_qkv_loop{nm}")
                    k(f"L_qkv_last{nm}:")
                    mf()
    k(f"""
    s_cmp_ge_u32 s27, 8
    s_cbranch_scc1 L_qkv_vloop
    """)
    mainloop(False)
    k(f"""
    s_cmp_ge_u32 s27, 4
    s_cbranch_scc1 L_qkv_kpar
    s_mov_b32 s40, {QF}
    s_mov_b32 s41, 65536
    s_mov_b32 s42, 1024
    s_mov_b32 s43, 65536
    s_mov_b32 s44, {f32(0.25*LOG2E)}
    v_lshlrev_b32 v20, 4, v2
    s_branch L_qkv_epi
L_qkv_kpar:
    s_mov_b32 s40, {KV}
    s_mov_b32 s41, 131072
    s_mov_b32 s42, 2048
    s_mov_b32 s43, 131072
    s_mov_b32 s44, 1.0
    v_and_b32 v20, 0x33, v2
    v_bfe_u32 v21, v2, 2, 1
    v_lshl_or_b32 v20, v21, 3, v20
    v_bfe_u32 v21, v2, 3, 1
    v_lshl_or_b32 v20, v21, 2, v20
    v_lshlrev_b32 v20, 4, v20
    s_branch L_qkv_epi
L_qkv_vloop:
    """)
    mainloop(True)
    k(f"""
    s_mov_b32 s40, {KV + 1024}
    s_mov_b32 s41, 131072
    s_mov_b32 s42, 2048
    s_mov_b32 s43, 16
    s_mov_b32 s44, 1.0
    v_bfe_u32 v20, v2, 4, 1
    v_lshlrev_b32 v20, 17, v20
    v_lshrrev_b32 v21, 5, v2
    v_lshl_add_u32 v20, v21, 9, v20
    v_and_b32 v21, 15, v2
    v_lshl_add_u32 v20, v21, 5, v20
L_qkv_epi:
    s_and_b32 s45, s27, 3
    s_lshl_b32 s45, s45, 3
    s_lshl_b32 s46, s33, 2
    s_add_u32 s45, s45, s46
    s_mul_i32 s45, s45, s41
    s_add_u32 s40, s40, s45
    s_lshl_b32 s45, s26, 2
    s_lshl_b32 s46, s32, 1
    s_add_u32 s45, s45, s46
    s_mul_i32 s45, s45, s42
    s_add_u32 s40, s40, s45
    s_lshl_b32 s41, s41, 1
    s_mov_b32 s45, s44
    s_nop 4
    """)
    stamp(k, 3)
    for ci in range(2):
        for ti in range(2):
            a = ACC + (ci*2+ti)*16
            for r in range(0, 16, 2): k(f"v_pk_mul_f32 {vr(a+r,2)}, {vr(a+r,2)}, s[44:45]")
            for half in range(2):
                d = FX + ((ci*2+ti)*2+half)*4
                for j in range(4):
                    k(f"v_cvt_pk_bf16_f32 v{d+j}, v{a+half*8+2*j}, v{a+half*8+2*j+1}")
                k("s_mov_b32 s46, s40")
                if ci: k("s_add_u32 s46, s46, s41")
                if ti: k("s_add_u32 s46, s46, s42")
                if half: k("s_add_u32 s46, s46, s43")
                k(f"buffer_store_dwordx4 {vr(d,4)}, v20, s[20:23], s46 offen{ST1}")
    stamp(k, 4)
    stamp_flush(k, 0, 5)
    k("s_endpgm")
    XR = 8; XF = 40; GW = 104; RS = 112; RG = 120
    k("L_qkv_ln:")
    k(f"""
    s_cmp_lt_u32 s3, 4
    s_cbranch_scc1 L_qkv_ln1
    s_cmp_lg_u32 s3, 4
    s_cbranch_scc1 L_qkv_ln0
    """)
    code_prefetch(k, 4, 5, 40, end)
    k(f"""
L_qkv_ln0:
    s_cmp_lg_u32 s2, 192
    s_cbranch_scc1 {end}
    v_lshlrev_b32 v3, 4, v0
    v_mov_b32 v4, 0
    v_mov_b32 v5, 0
    v_mov_b32 v6, 0
    v_mov_b32 v7, 0
    s_mov_b32 s28, {FLG - 4096}
    s_waitcnt vmcnt(0)
    v_mov_b32 v5, 0
    buffer_store_dwordx4 v[4:7], v3, s[20:23], s28 offen
    s_endpgm
L_qkv_ln1:
    """)
    srd(k, 24, 10, 1024)
    k(f"""
    s_sub_u32 s28, s2, 192
    s_lshl_b32 s28, s28, 5
    s_lshl_b32 s29, s3, 3
    s_add_u32 s28, s28, s29        ; T0
    s_lshl_b32 s29, s28, 10
    v_lshlrev_b32 v3, 4, v2
    s_add_u32 s30, s29, 4096
    """)
    for t in range(8):
        k(f"buffer_load_dwordx4 {vr(XR+4*t,4)}, v3, s[12:15], s{29 if t < 4 else 30} offen offset:{(t&3)*1024}")
    k(f"buffer_load_dwordx4 v[4:7], v3, s[24:27], 0 offen")
    stamp(k, 1)
    k("s_waitcnt vmcnt(0)")
    stamp(k, 2); stamp(k, 3)
    for j in range(4):
        k(f"v_lshlrev_b32 v{GW+2*j}, 16, v{4+j}")
        k(f"v_and_b32 v{GW+2*j+1}, 0xffff0000, v{4+j}")
    k("s_mov_b32 s48, 0xffff0000")
    for t in range(8):
        for j in range(4):
            k(f"v_lshlrev_b32 v{XF+8*t+2*j}, 16, v{XR+4*t+j}")
            k(f"v_and_b32 v{XF+8*t+2*j+1}, s48, v{XR+4*t+j}")
    for t in range(8):
        k(f"v_add_f32 v{RS+t}, v{XF+8*t}, v{XF+8*t+1}")
        k(f"v_mul_f32 v{RG+t}, v{XF+8*t}, v{GW}")
    for i in range(1, 8):
        for t in range(8):
            if i >= 2: k(f"v_add_f32 v{RS+t}, v{RS+t}, v{XF+8*t+i}")
            k(f"v_fmac_f32 v{RG+t}, v{XF+8*t+i}, v{GW+i}")
    def wave_reduce(regs):
        for ctl in ("row_shr:1", "row_shr:2", "row_shr:4", "row_shr:8"):
            for r in regs: k(f"v_add_f32_dpp v{r}, v{r}, v{r} {ctl} row_mask:0xf bank_mask:0xf bound_ctrl:0")
        for r in regs: k(f"v_add_f32_dpp v{r}, v{r}, v{r} row_bcast:15 row_mask:0xa bank_mask:0xf")
        for r in regs: k(f"v_add_f32_dpp v{r}, v{r}, v{r} row_bcast:31 row_mask:0xc bank_mask:0xf")
    wave_reduce(list(range(RS, RS+16)))
    k(f"s_mov_b32 s48, {f32(1.0/512)}")
    k(f"s_mov_b32 s49, {f32(-LOG2E)}")
    for t in range(8): k(f"v_mul_f32 v{RS+t}, s48, v{RS+t}")
    for t in range(8): k(f"v_mul_f32 v{RG+t}, s49, v{RG+t}")
    for t in range(8): k(f"v_readlane_b32 s{40+t}, v{RS+t}, 63")
    for t in range(8): k(f"v_exp_f32 v{RG+t}, v{RG+t}")
    for t in range(8):
        for i in range(8): k(f"v_subrev_f32 v{XF+8*t+i}, s{40+t}, v{XF+8*t+i}")
    for t in range(8): k(f"v_add_f32 v{RG+t}, 1.0, v{RG+t}")
    for t in range(8): k(f"v_rcp_f32 v{RG+t}, v{RG+t}")
    for t in range(8): k(f"v_mul_f32 v{RS+t}, v{XF+8*t}, v{XF+8*t}")
    for i in range(1, 8):
        for t in range(8): k(f"v_fmac_f32 v{RS+t}, v{XF+8*t+i}, v{XF+8*t+i}")
    wave_reduce(list(range(RS, RS+8)))
    k(f"v_mov_b32 v4, {f32(1e-5)}")
    for t in range(8): k(f"v_fma_f32 v{RS+t}, v{RS+t}, s48, v4")
    for t in range(8): k(f"v_rsq_f32 v{RS+t}, v{RS+t}")
    k("s_nop 0")
    for t in range(8): k(f"v_readlane_b32 s{40+t}, v{RS+t}, 63")
    k(f"""
    s_lshl_b32 s49, s28, 2
    s_add_u32 s49, s49, {GF}
    v_mov_b32 v5, 0
    s_mov_b32 exec_lo, 0
    s_mov_b32 exec_hi, 0x80000000
    buffer_store_dwordx4 {vr(RG,4)}, v5, s[20:23], s49 offen{ST1}
    buffer_store_dwordx4 {vr(RG+4,4)}, v5, s[20:23], s49 offen offset:16{ST1}
    s_mov_b64 exec, -1
    v_lshrrev_b32 v4, 3, v2
    v_lshlrev_b32 v4, 18, v4
    v_bfe_u32 v5, v2, 2, 1
    v_lshl_add_u32 v4, v5, 10, v4
    v_and_b32 v5, 3, v2
    v_lshl_add_u32 v4, v5, 7, v4
    s_lshr_b32 s49, s28, 4
    s_lshl_b32 s49, s49, 11
    s_bfe_u32 s50, s28, 0x10003
    s_lshl_b32 s50, s50, 9
    s_add_u32 s49, s49, s50
    s_add_u32 s49, s49, {HF}
    """)
    for i in range(8):
        for t in range(8): k(f"v_mul_f32 v{XF+8*t+i}, s{40+t}, v{XF+8*t+i}")
        for p in range(4):
            k(f"v_cvt_pk_bf16_f32 v{XR+4*i+p}, v{XF+8*(2*p)+i}, v{XF+8*(2*p+1)+i}")
        k(f"buffer_store_dwordx4 {vr(XR+4*i,4)}, v4, s[20:23], s49 offen offset:{i*16}")
    stamp(k, 4)
    stamp_flush(k, 0, 5)
    k(f"{end}:")
    k("s_endpgm")
    return k

KVP = 2080
MRING = 64*KVP
CNT = MRING + 4*6144
class MG:
    ACC = 16; FO = 80; RF = 112
    vL0 = 3; vL1 = 4; vDma = 5; vTr = 6
    vZ = 8; vOne = 9; vRd = 10
    vWr = 13
    T = 128
def mg_tr_setup(k, sigma, gx):
    a, b, c = MG.T, MG.T+1, MG.T+2
    k(f"""
    v_bfe_u32 v{a}, v2, 2, 2             ; r
    v_lshrrev_b32 v{b}, 5, v2            ; hh
    v_lshl_add_u32 v{b}, v{b}, {2 if sigma else 3}, v{a}
    v_lshlrev_b32 v{b}, 7, v{b}
    v_bfe_u32 v{c}, v2, 4, 1
    v_lshl_add_u32 v{b}, v{c}, 5, v{b}
    v_and_b32 v{c}, 3, v2
    v_lshl_add_u32 v{b}, v{c}, 3, v{b}
    v_lshrrev_b32 v{c}, 1, v{a}
    v_lshl_add_u32 v{b}, v{c}, 6, v{b}
    v_xor_b32 v{b}, s{gx}, v{b}
    v_add_u32 v{MG.vTr}, s30, v{b}
    v_xor_b32 v{b}, 64, v{b}
    v_add_u32 v{MG.vTr+1}, s30, v{b}
    """)
def mg_dma_setup(k, vdst, pitch):
    a, b, c = MG.T, MG.T+1, MG.T+2
    k(f"""
    v_lshrrev_b32 v{a}, 3, v2
    v_mul_u32_u24 v{vdst}, {pitch}, v{a}
    v_bfe_u32 v{b}, v2, 4, 1
    v_lshlrev_b32 v{b}, 2, v{b}
    v_and_b32 v{c}, 7, v2
    v_xor_b32 v{b}, v{b}, v{c}
    v_lshl_add_u32 v{vdst}, v{b}, 4, v{vdst}
    """)
class Seg:
    def __init__(self, nsteps, ring_srd, s_ring, pitch, s_fo, ring_is_A, sigma, fo_flags=""):
        self.__dict__.update(locals())
    def ring(self, j):
        sl = j % 3
        return ([f"s_add_u32 m0, s30, {sl*2048}",
                 f"s_add_u32 s31, s{self.s_ring}, {8*self.pitch}",
                 f"buffer_load_dwordx4 v{MG.vDma}, s[{self.ring_srd}:{self.ring_srd+3}], s{self.s_ring} offen lds"],
                [f"s_add_u32 m0, s30, {sl*2048+1024}",
                 f"s_add_u32 s{self.s_ring}, s{self.s_ring}, {16*self.pitch}",
                 f"buffer_load_dwordx4 v{MG.vDma}, s[{self.ring_srd}:{self.ring_srd+3}], s31 offen lds"])
    def fo(self, j):
        sl = j % 4
        return [f"buffer_load_dwordx4 {vr(MG.FO+sl*8,4)}, v{MG.vL0}, s[20:23], s{self.s_fo} offen{self.fo_flags}",
                f"buffer_load_dwordx4 {vr(MG.FO+sl*8+4,4)}, v{MG.vL1}, s[20:23], s{self.s_fo} offen{self.fo_flags}",
                f"s_add_u32 s{self.s_fo}, s{self.s_fo}, 2048"]
    def group(self, j):
        r = self.ring(j); return r[0] + r[1] + self.fo(j)
    def trs(self, j):
        sl = j % 3; buf = j & 1
        ustep = 1024 if self.sigma else 512
        return [f"ds_read_b64_tr_b16 {vr(MG.RF+buf*8+g*4+u*2,2)}, v{MG.vTr+g} offset:{sl*2048+u*ustep}" for g in range(2) for u in range(2)]
    def mfmas(self, j):
        sl = j % 4; buf = j & 1
        out = []
        for mi in range(2):
            for ni in range(2):
                a = MG.ACC + (mi*2+ni)*16
                if self.ring_is_A: A = vr(MG.RF+buf*8+mi*4, 4); B = vr(MG.FO+sl*8+ni*4, 4)
                else:              A = vr(MG.FO+sl*8+mi*4, 4); B = vr(MG.RF+buf*8+ni*4, 4)
                out.append(f"v_mfma_f32_32x32x16_bf16 {vr(a,16)}, {A}, {B}, {'0' if j == 0 else vr(a,16)}")
        return out
    def prologue(self, k):
        for j in range(3): k.emit(self.group(j))
    def run(self, k, st=None):
        n = self.nsteps
        if st is not None: stamp(k, st)
        k("s_waitcnt vmcnt(10)")
        if st is not None: stamp(k, st+1)
        k.emit(self.trs(0))
        k("s_waitcnt lgkmcnt(0)")
        k.emit(self.group(3))
        for i in range(n):
            last = min(i+3, n-1)
            m = self.mfmas(i)
            if i + 1 < n:
                k(f"s_waitcnt vmcnt({2 + 4*(last-(i+1))})")
                k.emit(self.trs(i+1))
            else:
                k("s_waitcnt vmcnt(0)")
            more = i + 4 < n
            k(m[0])
            if i + 1 < n: k("s_waitcnt lgkmcnt(0)")
            k(m[1])
            if more: k.emit(self.ring(i+4)[0])
            k(m[2])
            if more: k.emit(self.ring(i+4)[1])
            k(m[3])
            if more: k.emit(self.fo(i+4))
def mbar(k):
    l = k.lab("mbar")
    k(f"""
    s_waitcnt lgkmcnt(0)
    s_mov_b64 exec, 1
    ds_add_u32 v{MG.vZ}, v{MG.vOne} offset:68
    s_mov_b64 exec, -1
    s_add_u32 s37, s37, 4
{l}:
    ds_read_b32 v{MG.T}, v{MG.vZ} offset:68
    s_waitcnt lgkmcnt(0)
    v_readfirstlane_b32 s38, v{MG.T}
    s_cmp_lt_u32 s38, s37
    s_cbranch_scc1 {l}
    """)
def mg_reduce(k):
    A = MG.ACC; T = MG.FO
    k("s_nop 15")
    for h in range(2):
        for r in range(1, 4):
            for q in range(2):
                k(f"ds_write_b128 v{MG.vWr}, {vr(A+r*16+(2*h+q)*4,4)} offset:{(r-1)*2048+q*1024}")
        mbar(k)
        for r in range(1, 4):
            for q in range(2):
                k(f"ds_read_b128 {vr(T+((r-1)*2+q)*4,4)}, v{MG.vRd+r-1} offset:{(r-1)*2048+q*1024}")
        if h == 0: mbar(k)
        else: k("s_waitcnt lgkmcnt(0)")
        for j in range(8):
            k(f"v_add_f32 v{T+j}, v{T+j}, v{T+8+j}")
            k(f"v_add_f32 v{A+8*h+j}, v{A+8*h+j}, v{T+16+j}")
        for j in range(8):
            k(f"v_add_f32 v{A+8*h+j}, v{A+8*h+j}, v{T+j}")

def m_hold(k):
    if "n" in OPT: k("s_endpgm")
    if "h" not in OPT: return
    l = k.lab("hold")
    k(f"""
{l}:
    s_sleep 2
    ds_read_b32 v{MG.T}, v{MG.vZ} offset:64
    s_waitcnt lgkmcnt(0)
    v_readfirstlane_b32 s38, v{MG.T}
    s_cmp_lt_u32 s38, 28
    s_cbranch_scc1 {l}
    """)
def k2():
    k = Kern("attn_kernel", 256, 768, 163840, nvgpr=144)
    end = "L_attn_end"
    Q, C, O, S0, S1, K0, K1, V0a, V0b, V1 = 4, 8, 24, 40, 56, 72, 76, 80, 84, 88
    IDX, AK, AV, G, T0, T1, VZ, VC, L16 = 92, 93, 94, 95, 96, 97, 98, 99, 100
    S = [S0, S1]; V0 = [V0a, V0b]; KF = [K0, K1]
    entry(k, 256, end, """
    s_load_dwordx2 s[8:9], s[0:1], 88
    s_load_dwordx8 s[40:47], s[0:1], 32
    """)
    k(f"""
    s_and_b32 s24, s2, 7
    s_lshr_b32 s25, s2, 3
    s_cmp_ge_u32 s3, 8
    s_cbranch_scc1 L_m_start
    s_lshl_b32 s26, s24, 2
    s_lshr_b32 s27, s25, 3
    s_add_u32 s26, s26, s27        ; head
    s_and_b32 s27, s25, 7          ; qb
    s_lshl_b32 s27, s27, 3
    s_add_u32 s27, s27, s3         ; qtile
    v_lshlrev_b32 v{L16}, 4, v2
    s_lshl_b32 s28, s26, 17
    s_lshl_b32 s29, s3, 12         ; w*2 tiles*2048
    s_add_u32 s28, s28, s29
    s_add_u32 s28, s28, {KV}
    s_mul_i32 s29, s3, {2*KVP}
    s_lshl_b32 s30, s26, 16
    s_lshl_b32 s31, s27, 10
    s_add_u32 s30, s30, s31
    v_and_b32 v{T0}, 31, v2
    v_lshlrev_b32 v{T0}, 2, v{T0}
    s_lshl_b32 s31, s27, 7
    s_add_u32 s31, s31, {GF}
    s_waitcnt lgkmcnt(0)
    """)
    srd(k, 20, 8, WS_BYTES)
    def kvdma(c):
        out = []
        for i in range(2):
            out += [f"s_add_u32 m0, s29, {(8*c+i)*KVP}",
                    f"s_add_u32 s32, s28, {(8*c+i)*2048}",
                    f"buffer_load_dwordx4 v{L16}, s[20:23], s32 offen lds",
                    f"buffer_load_dwordx4 v{L16}, s[20:23], s32 offen offset:1024 lds"]
        return out
    k(f"buffer_load_dwordx4 {vr(Q,4)}, v{L16}, s[20:23], s30 offen")
    k.emit(kvdma(0))
    k(f"buffer_load_dword v{G}, v{T0}, s[20:23], s31 offen")
    k(f"""
    v_mov_b32 v{IDX}, 0xdddddddd
    v_mov_b32 v{VZ}, {CNT}
    v_mov_b32 v{VC}, {CNT + 4}
    s_mov_b32 s36, 0
    s_mov_b32 s39, 0
    s_cmp_ge_u32 s3, 4
    s_cbranch_scc1 L_attn_young
    """)
    stamp(k, 1)
    k(f"""
    s_waitcnt vmcnt(1)
    s_barrier
    s_branch L_attn_go
L_attn_young:
    v_mov_b32 v{T1}, 1
    s_barrier
    """)
    def signal(c):
        k(f"""
        s_mov_b64 exec, 1
        ds_add_u32 v{VZ}, v{T1} offset:{4*c}
        ds_add_u32 v{VZ}, v{T1} offset:64
        s_mov_b64 exec, -1
        """)
    k.emit(kvdma(1))
    for c in range(1, 8):
        if c + 2 <= 7:
            k.emit(kvdma(c+1))
            k("s_waitcnt vmcnt(8)")
        else:
            k(f"s_waitcnt vmcnt({(7-c)*4})")
        signal(c)
    stamp(k, 1)
    if "y" in OPT: k("s_endpgm")
    k("L_attn_go:")
    stamp(k, 2)
    k(f"""
    ds_read_b128 {vr(K0,4)}, v{L16}
    s_waitcnt lgkmcnt(0)
    v_mfma_f32_32x32x16_bf16 {vr(S0,16)}, {vr(K0,4)}, {vr(Q,4)}, 0
    s_nop 15
    v_max3_f32 v{T0}, v{S0}, v{S0+1}, v{S0+2}
    """)
    for j in range(3, 15, 2): k(f"v_max3_f32 v{T0}, v{T0}, v{S0+j}, v{S0+j+1}")
    k(f"v_max_f32 v{T0}, v{T0}, v{S0+15}")
    k("L_attn_setmax:")
    k(f"""
    v_mov_b32 v{T1}, v{T0}
    v_mov_b32 v{AK}, v{L16}
    v_lshrrev_b32 v{AV}, 5, v2
    v_permlane32_swap_b32 v{T0}, v{T1}
    v_lshlrev_b32 v{AV}, 9, v{AV}
    v_and_b32 v{C}, 15, v2
    v_max_f32 v{T0}, v{T0}, v{T1}
    v_lshl_add_u32 v{AV}, v{C}, 5, v{AV}
    v_and_b32 v{C}, 16, v2
    v_cmp_eq_u32 vcc, 0, v{C}
    v_mov_b32 v{C}, 1024
    s_nop 0
    v_cndmask_b32 v{AV}, v{C}, v{AV}, vcc
    s_nop 0
    ds_read_b128 {vr(K0,4)}, v{AK}
    ds_read_b128 {vr(V0a,4)}, v{AV} offset:1024
    ds_read_b128 {vr(V1,4)}, v{AV} offset:1024
    ds_read_b128 {vr(K1,4)}, v{AK} offset:{KVP}
    """)
    for r in range(16): k(f"v_sub_f32 v{C+r}, 0, v{T0}")
    for r in range(16): k(f"v_mov_b32 v{O+r}, 0")
    for r in range(8): k(f"v_mov_b32 v{S1+8+r}, 0")
    k(f"""
    s_waitcnt lgkmcnt(0)
    v_mfma_f32_32x32x16_bf16 {vr(S0,16)}, {vr(K0,4)}, {vr(Q,4)}, {vr(C,16)}
    ds_read_b128 {vr(K0,4)}, v{AK} offset:{2*KVP}
    s_mov_b32 s33, 0
    s_nop 10
    """)
    stamp(k, 3)
    if "l" in OPT: k("s_setprio 2")
    k(".p2align 6")
    k("L_attn_loop:")
    NT = 16
    for t in range(NT):
        cur = S[t & 1]; prv = S[(t+1) & 1]
        e = lambda a, b: [f"v_exp_f32 v{cur+i}, v{cur+i}" for i in range(a, b)]
        k.emit(e(0, 2))
        k(f"v_smfmac_f32_32x32x32_bf16 {vr(O,16)}, {vr(V1,4)}, {vr(prv+8,8)}, v{IDX}")
        rd = not (("d" in OPT and t & 1) or "D" in OPT)
        if rd: k(f"ds_read_b128 {vr(V1,4)}, v{AV} offset:{t*KVP+1024+16}")
        if rd: k(f"ds_read_b128 {vr(V0[(t+1)&1],4)}, v{AV} offset:{(t+1)*KVP+1024}")
        k.emit(e(2, 6))
        k(f"v_mfma_f32_32x32x16_bf16 {vr(prv,16)}, {vr(KF[(t+1)&1],4)}, {vr(Q,4)}, {vr(C,16)}")
        if rd: k(f"ds_read_b128 {vr(KF[(t+1)&1],4)}, v{AK} offset:{(t+3)*KVP}")
        k.emit(e(6, 12))
        k(f"v_smfmac_f32_32x32x32_bf16 {vr(O,16)}, {vr(V0[t&1],4)}, {vr(cur,8)}, v{IDX}")
        k("s_waitcnt lgkmcnt(1)")
        if t % 8 == 4: k("s_cmp_lg_u32 s39, 0")
        elif t == NT-2: k("s_add_u32 s33, s33, 1")
        elif t == NT-1: k(f"s_cmp_lt_u32 s33, {64//NT}")
        else: k("s_nop 0")
        k.emit(e(12, 16))
        if t % 8 == 4:
            sk = k.lab("rdy"); pl = k.lab("poll")
            k(f"""
            s_cbranch_scc1 {sk}
{pl}:
            ds_read_b32 v{T0}, v{VC}
            ds_read_b32 v{T1}, v{VZ} offset:64
            s_waitcnt lgkmcnt(0)
            v_readfirstlane_b32 s40, v{T0}
            v_readfirstlane_b32 s41, v{T1}
            s_cmp_lt_u32 s40, 4
            s_cbranch_scc1 {pl}
            s_cmp_ge_u32 s41, 28
            s_cselect_b32 s39, 1, 0
            v_add_u32 v{VC}, 4, v{VC}
            s_nop 0
{sk}:
            """)
            k(".p2align 3")
        if "l" in OPT and t in (8, 13):
            sk = k.lab("lad")
            k(f"""
            s_cmp_lg_u32 s33, {2 if t == 8 else 3}
            s_cbranch_scc1 {sk}
            s_setprio {1 if t == 8 else 0}
            s_nop 0
{sk}:
            """)
    k(f"""
    v_add_u32 v{AK}, {NT*KVP}, v{AK}
    v_add_u32 v{AV}, {NT*KVP}, v{AV}
    s_cbranch_scc1 L_attn_loop
    v_smfmac_f32_32x32x32_bf16 {vr(O,16)}, {vr(V1,4)}, {vr(S1+8,8)}, v{IDX}
    s_waitcnt lgkmcnt(0)
    s_nop 15
    s_cmp_lg_u32 s36, 0
    s_cbranch_scc1 L_attn_fin
    v_max3_f32 v{T0}, abs(v{O}), abs(v{O+1}), abs(v{O+2})
    v_max3_f32 v{T0}, v{T0}, abs(v{O+3}), abs(v{O+4})
    v_max3_f32 v{T0}, v{T0}, abs(v{O+5}), abs(v{O+6})
    v_max_f32 v{T0}, v{T0}, abs(v{O+7})
    v_add_f32 v{T1}, v{O}, v{O+1}
    v_add_f32 v{T1}, v{T1}, v{O+2}
    v_add_f32 v{T1}, v{T1}, v{O+3}
    v_add_f32 v{T1}, v{T1}, v{O+4}
    v_add_f32 v{T1}, v{T1}, v{O+5}
    v_add_f32 v{T1}, v{T1}, v{O+6}
    v_add_f32 v{T1}, v{T1}, v{O+7}
    s_mov_b32 s38, {f32(2.0**40)}
    s_mov_b32 s40, {f32(2.0**120)}
    v_cmp_gt_f32 vcc, s38, v{O+8}
    v_cmp_gt_f32 s[44:45], s40, v{T0}
    v_cmp_o_f32 s[42:43], v{T1}, v{T1}
    s_and_b64 vcc, vcc, s[44:45]
    s_and_b64 vcc, vcc, s[42:43]
    s_cmp_eq_u64 vcc, exec
    s_cbranch_scc1 L_attn_fin
    s_mov_b32 s36, 1
    s_mov_b32 s39, 1
    v_mov_b32 v{AK}, v{L16}
    v_mov_b32 v{T0}, 0xff800000
    s_mov_b32 s33, 0
L_attn_maxloop:
    ds_read_b128 {vr(K0,4)}, v{AK}
    s_waitcnt lgkmcnt(0)
    v_mfma_f32_32x32x16_bf16 {vr(S0,16)}, {vr(K0,4)}, {vr(Q,4)}, 0
    v_add_u32 v{AK}, {KVP}, v{AK}
    s_nop 15
    """)
    for j in range(0, 16, 2): k(f"v_max3_f32 v{T0}, v{T0}, v{S0+j}, v{S0+j+1}")
    k(f"""
    s_add_u32 s33, s33, 1
    s_cmp_lt_u32 s33, 64
    s_cbranch_scc1 L_attn_maxloop
    s_branch L_attn_setmax
L_attn_fin:
    """)
    stamp(k, 4)
    k(f"""
    v_rcp_f32 v{T0}, v{O+8}
    s_lshr_b32 s30, s27, 1
    s_lshl_b32 s30, s30, 16
    s_lshl_b32 s31, s26, 11
    s_add_u32 s30, s30, s31
    s_and_b32 s31, s27, 1
    s_lshl_b32 s31, s31, 10
    s_add_u32 s30, s30, s31
    s_add_u32 s30, s30, {OF}
    s_waitcnt vmcnt(0)
    v_mul_f32 v{T0}, v{T0}, v{G}
    """)
    for r in range(8): k(f"v_mul_f32 v{O+r}, v{O+r}, v{T0}")
    for j in range(4): k(f"v_cvt_pk_bf16_f32 v{K0+j}, v{O+2*j}, v{O+2*j+1}")
    k(f"buffer_store_dwordx4 {vr(K0,4)}, v{L16}, s[20:23], s30 offen{ST2}")
    stamp(k, 5); stamp(k, 6)
    stamp_flush(k, 1, 7)
    k("s_endpgm")

    A = MG.ACC
    k("L_m_start:")
    k(f"""
    s_setprio 3
    s_sub_u32 s33, s3, 8           ; mw
    s_mul_i32 s30, s33, 6144
    s_add_u32 s30, s30, {MRING}
    s_lshr_b32 s34, s33, 1         ; a = mw>>1
    s_and_b32 s35, s33, 1          ; b = mw&1
    v_mov_b32 v{MG.vZ}, {CNT}
    v_mov_b32 v{MG.vOne}, 1
    s_mov_b32 s37, 0
    s_cmp_lg_u32 s33, 0
    s_cbranch_scc1 L_m_i1
    v_lshlrev_b32 v136, 2, v2
    v_add_u32 v136, {CNT}, v136
    v_cmp_eq_u32 vcc, 8, v2
    v_mov_b32 v137, 4
    s_nop 0
    v_cndmask_b32 v137, 0, v137, vcc
    ds_write_b32 v136, v137
L_m_i1:
    s_cmp_lg_u32 s33, 1
    s_cbranch_scc1 L_m_i2
    v_mul_u32_u24 v136, {KVP}, v2
    v_mov_b32 v140, 0x3f803f80
    v_mov_b32 v141, 0x3f803f80
    v_mov_b32 v142, 0x3f803f80
    v_mov_b32 v143, 0x3f803f80
    ds_write_b128 v136, v[140:143] offset:2048
    ds_write_b128 v136, v[140:143] offset:2064
L_m_i2:
    s_cmp_lg_u32 s33, 2
    s_cbranch_scc1 L_m_i3
    s_getpc_b64 s[48:49]
L_m_pc:
    s_sub_u32 s48, s48, L_m_pc-L_attn_go
    s_subb_u32 s49, s49, 0
    v_lshlrev_b32 v136, 7, v2
    global_load_dword v137, v136, s[48:49]
    v_add_u32 v136, 8192, v136
    v_min_u32 v136, {end}-L_attn_go-4, v136
    global_load_dword v137, v136, s[48:49]
L_m_i3:
    v_lshlrev_b32 v14, 4, v2
    v_add_u32 v{MG.vWr}, s30, v14
    """)
    for r in range(1, 4):
        k(f"""
        s_xor_b32 s31, s33, {r}
        s_mul_i32 s31, s31, 6144
        s_add_u32 s31, s31, {MRING}
        v_add_u32 v{MG.vRd+r-1}, s31, v14
        """)
    k("s_waitcnt lgkmcnt(0)")
    srd(k, 20, 8, WS_BYTES)
    srd(k, 12, 40, 2048*1376*2)
    srd(k, 16, 42, 1376*2)
    srd(k, 52, 44, 1376*2048*2)
    srd(k, 56, 46, 2048*2)
    k(f"""
    s_cmp_ge_u32 s25, 22
    s_cbranch_scc1 L_m_nog1
    s_mul_i32 s26, s24, 22
    s_add_u32 s26, s26, s25
    s_and_b32 s27, s26, 7          ; dt
    s_lshr_b32 s26, s26, 3         ; ft
    s_mul_i32 s28, s33, {512*2752}
    s_lshl_b32 s31, s26, 7
    s_add_u32 s28, s28, s31        ; w1 offset
    s_lshl_b32 s29, s27, 18
    s_lshl_b32 s31, s33, 16
    s_add_u32 s29, s29, s31
    s_add_u32 s29, s29, {HF}
    s_lshl_b32 s36, s34, 6
    s_lshl_b32 s31, s35, 10
    v_xor_b32 v{MG.vL0}, s31, v14
    v_xor_b32 v{MG.vL1}, 1024, v{MG.vL0}
    """)
    mg_dma_setup(k, MG.vDma, 2752)
    seg = Seg(32, 12, 28, 2752, 29, True, False)
    k("s_barrier")
    m_hold(k)
    seg.prologue(k)
    mg_tr_setup(k, False, 36)
    seg.run(k, st=1)
    stamp(k, 3)
    k(f"""
    s_lshl_b32 s36, s34, 6
    s_lshl_b32 s31, s26, 7
    s_add_u32 s36, s36, s31
    v_lshrrev_b32 v15, 5, v2
    v_lshlrev_b32 v15, 3, v15
    """)
    for q in range(4): k(f"buffer_load_dwordx2 {vr(MG.RF+2*q,2)}, v15, s[16:19], s36 offen offset:{q*16}")
    mg_reduce(k)
    B = A + 16; T = A + 32
    k("s_waitcnt vmcnt(0)")
    for q in range(4):
        for j in range(2):
            k(f"v_lshlrev_b32 v{B+4*q+2*j}, 16, v{MG.RF+2*q+j}")
            k(f"v_and_b32 v{B+4*q+2*j+1}, 0xffff0000, v{MG.RF+2*q+j}")
    c0 = math.sqrt(2/math.pi)
    k(f"s_mov_b32 s36, {f32(-2*LOG2E*c0*0.044715)}")
    k(f"v_mov_b32 v15, {f32(-2*LOG2E*c0)}")
    for r in range(16): k(f"v_add_f32 v{A+r}, v{A+r}, v{B+r}")
    for r in range(16): k(f"v_mul_f32 v{T+r}, v{A+r}, v{A+r}")
    for r in range(16): k(f"v_fma_f32 v{T+r}, v{T+r}, s36, v15")
    for r in range(16): k(f"v_mul_f32 v{T+r}, v{T+r}, v{A+r}")
    for r in range(16): k(f"v_exp_f32 v{T+r}, v{T+r}")
    for r in range(16): k(f"v_add_f32 v{T+r}, 1.0, v{T+r}")
    for r in range(16): k(f"v_rcp_f32 v{T+r}, v{T+r}")
    for r in range(16): k(f"v_mul_f32 v{A+r}, v{A+r}, v{T+r}")
    for j in range(8): k(f"v_cvt_pk_bf16_f32 v{B+j}, v{A+2*j}, v{A+2*j+1}")
    k(f"""
    s_mul_i32 s36, s27, {UKS*2048}
    s_lshl_b32 s31, s26, 13
    s_add_u32 s36, s36, s31
    s_lshl_b32 s31, s34, 12
    s_add_u32 s36, s36, s31
    s_lshl_b32 s31, s35, 10
    s_add_u32 s36, s36, s31
    s_add_u32 s36, s36, {UF}
    buffer_store_dwordx4 {vr(B,4)}, v14, s[20:23], s36 offen sc1
    buffer_store_dwordx4 {vr(B+4,4)}, v14, s[20:23], s36 offen offset:2048 sc1
    s_lshl_b32 s36, s27, 9
    s_lshl_b32 s31, s26, 4
    s_add_u32 s36, s36, s31
    s_lshl_b32 s31, s33, 2
    s_add_u32 s36, s36, s31
    s_add_u32 s36, s36, {FLG}
    v_mov_b32 v15, 0
    s_waitcnt vmcnt(0)
    s_mov_b64 exec, 1
    buffer_store_dword v{MG.vOne}, v15, s[20:23], s36 offen sc1
    s_mov_b64 exec, -1
    """)
    mbar(k)
    k(f"""
    s_branch L_m_g2
L_m_nog1:
    s_barrier
    """)
    m_hold(k)
    stamp(k, 1)
    if "p" not in OPT:
      k(f"""
    s_sub_u32 s26, s25, 22
    s_lshl_b32 s26, s26, 2
    s_add_u32 s26, s26, s33        ; p
    s_mul_i32 s27, s24, 22
    s_add_u32 s28, s27, 21
    s_lshr_b32 s27, s27, 3         ; ft_lo
    s_lshr_b32 s28, s28, 3
    s_sub_u32 s28, s28, s27
    s_lshl_b32 s28, s28, 7
    s_add_u32 s28, s28, 124        ; span-4
    s_lshl_b32 s27, s27, 7
    v_lshrrev_b32 v128, 4, v2
    v_and_b32 v129, 15, v2
    v_lshlrev_b32 v130, 16, v128
    v_lshl_add_u32 v130, v129, 7, v130
    v_lshl_add_u32 v131, v128, 9, v129
    v_mul_u32_u24 v131, 2752, v131
    s_mov_b32 s29, s26
L_m_pf:
    s_mul_i32 s31, s29, 5042       ; u/13
    s_lshr_b32 s31, s31, 16
    s_mul_i32 s36, s31, 13
    s_sub_u32 s36, s29, s36        ; c
    s_cmp_ge_u32 s36, 8
    s_cbranch_scc1 L_m_pfw
    s_lshl_b32 s36, s36, 18
    s_lshl_b32 s31, s31, 11
    s_add_u32 s36, s36, s31
    s_add_u32 s36, s36, {HF}
    buffer_load_dword v132, v130, s[20:23], s36 offen
    s_branch L_m_pfn
L_m_pfw:
    s_sub_u32 s36, s36, 8
    s_lshl_b32 s36, s36, 7
    s_min_u32 s36, s36, s28
    s_add_u32 s36, s36, s27
    s_mul_i32 s31, s31, {16*2752}
    s_add_u32 s36, s36, s31
    buffer_load_dword v132, v131, s[12:15], s36 offen
L_m_pfn:
    s_add_u32 s29, s29, 40
    s_cmp_lt_u32 s29, 416
    s_cbranch_scc1 L_m_pf
    v_lshrrev_b32 v128, 2, v2
    v_and_b32 v129, 3, v2
    v_lshlrev_b32 v130, 12, v128
    v_lshl_add_u32 v130, v129, 7, v130
    s_lshl_b32 s27, s24, 9
L_m_pf2:
    s_lshl_b32 s36, s26, 16
    s_add_u32 s36, s36, s27
    buffer_load_dword v132, v130, s[52:55], s36 offen
    s_add_u32 s26, s26, 40
    s_cmp_lt_u32 s26, 86
    s_cbranch_scc1 L_m_pf2
    """)
    stamp(k, 2)
    k("s_waitcnt vmcnt(0)")
    stamp(k, 3)
    k(f"""
L_m_g2:
    s_lshl_b32 s26, s24, 2
    s_lshr_b32 s27, s25, 3
    s_add_u32 s26, s26, s27        ; st
    s_and_b32 s27, s25, 7          ; dt
    s_mul_i32 s28, s33, {22*16*4096}
    s_lshl_b32 s31, s26, 7
    s_add_u32 s28, s28, s31        ; w2 offset
    s_mul_i32 s29, s27, {UKS*2048}
    s_mul_i32 s31, s33, {22*2048}
    s_add_u32 s29, s29, s31
    s_add_u32 s29, s29, {UF}
    s_lshl_b32 s36, s35, 6
    s_lshl_b32 s31, s34, 10
    v_xor_b32 v{MG.vL0}, s31, v14
    v_xor_b32 v{MG.vL1}, 1024, v{MG.vL0}
    """)
    mg_dma_setup(k, MG.vDma, 4096)
    mg_tr_setup(k, True, 36)
    stamp(k, 4)
    k(f"""
    v_min_u32 v15, 21, v2
    v_lshlrev_b32 v15, 2, v15
    s_lshl_b32 s36, s27, 9
    s_mul_i32 s31, s33, 88
    s_add_u32 s36, s36, s31
    s_add_u32 s36, s36, {FLG}
    s_mov_b32 s39, 0
L_m_poll:
    buffer_load_dword v{MG.T}, v15, s[20:23], s36 offen sc1
    s_add_u32 s39, s39, 1
    s_waitcnt vmcnt(0)
    v_cmp_eq_u32 vcc, 1, v{MG.T}
    s_cmp_eq_u64 vcc, exec
    s_cbranch_scc1 L_m_ready
    s_sleep 4
    s_cmp_lt_u32 s39, 0x40000
    s_cbranch_scc1 L_m_poll
L_m_ready:
    """)
    stamp(k, 5)
    seg = Seg(22, 52, 28, 4096, 29, False, True, fo_flags=" sc1")
    if "t" not in OPT:
        k(f"""
        s_and_b32 s31, s26, 3
        s_mul_i32 s31, s31, {88*128}
        s_add_u32 s31, s31, s29
        v_lshlrev_b32 v{MG.T+1}, 7, v2
        v_min_u32 v{MG.T+2}, {23*128}, v{MG.T+1}
        buffer_load_dword v{MG.T+3}, v{MG.T+1}, s[20:23], s31 offen sc1
        s_add_u32 s31, s31, 8192
        buffer_load_dword v{MG.T+3}, v{MG.T+2}, s[20:23], s31 offen sc1
        """)
    seg.prologue(k)
    seg.run(k)
    stamp(k, 6)
    k(f"""
    v_and_b32 v15, 31, v2
    s_lshl_b32 s36, s26, 6
    s_lshl_b32 s31, s35, 5
    s_add_u32 s36, s36, s31
    v_add_u32 v15, s36, v15
    v_lshlrev_b32 v{MG.T+1}, 2, v15
    v_lshlrev_b32 v15, 1, v15
    s_mov_b32 s36, {GF}
    buffer_load_dword v{MG.RF}, v{MG.T+1}, s[20:23], s36 offen
    buffer_load_ushort v{MG.RF+1}, v15, s[56:59], 0 offen
    """)
    mg_reduce(k)
    k(f"""
    s_lshl_b32 s36, s26, 3
    s_add_u32 s36, s36, s27
    s_lshl_b32 s36, s36, 14
    s_lshl_b32 s31, s33, 12
    s_add_u32 s36, s36, s31
    s_add_u32 s36, s36, {BP}
    s_waitcnt vmcnt(0)
    v_sub_f32 v{MG.RF}, 1.0, v{MG.RF}
    v_lshlrev_b32 v{MG.RF+1}, 16, v{MG.RF+1}
    """)
    for r in range(16): k(f"v_add_f32 v{A+r}, v{A+r}, v{MG.RF+1}")
    for r in range(16): k(f"v_mul_f32 v{A+r}, v{A+r}, v{MG.RF}")
    for q in range(4): k(f"buffer_store_dwordx4 {vr(A+4*q,4)}, v14, s[20:23], s36 offen offset:{q*1024}{ST2}")
    stamp_flush(k, 1, 7)
    k(f"{end}:")
    k("s_endpgm")
    return k

def k3():
    k = Kern("fin_kernel", 256, 512, 131072, nvgpr=64)
    end = "L_fin_end"
    entry(k, 256, end, """
    s_load_dwordx2 s[8:9], s[0:1], 88
    s_load_dwordx2 s[10:11], s[0:1], 16
    s_load_dwordx2 s[40:41], s[0:1], 72
    """)
    k(f"""
    s_and_b32 s24, s2, 7
    s_lshr_b32 s25, s2, 3
    s_lshl_b32 s26, s24, 2
    s_lshr_b32 s27, s25, 3
    s_add_u32 s26, s26, s27        ; st
    s_and_b32 s27, s25, 7          ; dt
    v_lshlrev_b32 v3, 4, v2
    s_waitcnt lgkmcnt(0)
    """)
    srd(k, 20, 8, WS_BYTES)
    k(f"""
    s_cmp_lt_u32 s3, 4
    s_cbranch_scc1 L_fin_comp
    """)
    srd(k, 12, 10, 512*512*2)
    k(f"""
    s_sub_u32 s33, s3, 4
    v_lshrrev_b32 v5, 3, v2
    v_lshlrev_b32 v4, 10, v5
    v_bfe_u32 v5, v2, 4, 1
    v_lshlrev_b32 v5, 2, v5
    v_and_b32 v6, 7, v2
    v_xor_b32 v5, v5, v6
    v_lshl_add_u32 v4, v5, 4, v4
    s_lshl_b32 s28, s26, 16
    s_lshl_b32 s30, s33, 12
    s_add_u32 s28, s28, s30
    s_add_u32 s28, s28, {OF}       ; O src
    s_lshl_b32 s29, s33, 15
    s_lshl_b32 s31, s27, 7
    s_add_u32 s29, s29, s31
    s_add_u32 s36, s26, s27
    s_and_b32 s36, s36, 3          ; rotation
    """)
    for j in range(4):
        k(f"""
        s_lshl_b32 s38, s36, 14
        s_add_u32 s38, s38, s28
        s_lshl_b32 s39, s36, 17
        s_add_u32 s39, s39, s29
        s_add_u32 m0, s30, {j*32768}
        s_add_u32 s36, s36, 1
        """)
        for i in range(4):
            k(f"buffer_load_dwordx4 v3, s[20:23], s38 offen offset:{i*1024} lds")
        for i in range(4):
            k(f"s_add_u32 m0, s30, {j*32768 + 16384 + i*1024}")
            k(f"s_add_u32 s31, s39, {i*8192}")
            k(f"buffer_load_dwordx4 v4, s[12:15], s31 offen lds")
        k("s_and_b32 s36, s36, 3")
        if j >= 2:
            k("s_waitcnt vmcnt(16)")
            k("s_barrier")
    k("""
    s_waitcnt vmcnt(8)
    s_barrier
    s_waitcnt vmcnt(0)
    s_barrier
    s_endpgm
L_fin_comp:
    """)
    A = 16; FO = 32; FW = 48
    srd(k, 44, 40, 2048*512*2)
    k(f"""
    s_lshl_b32 s36, s26, 3
    s_add_u32 s36, s36, s27
    s_lshl_b32 s36, s36, 14
    s_lshl_b32 s31, s3, 12
    s_add_u32 s36, s36, s31
    s_add_u32 s36, s36, {BP}
    """)
    for q in range(4): k(f"buffer_load_dwordx4 {vr(A+4*q,4)}, v3, s[20:23], s36 offen offset:{q*1024}")
    k(f"""
    s_cmp_lg_u32 s3, 0
    s_cbranch_scc1 L_fin_nopf
    """)
    code_prefetch(k, 8, 9, 42, end)
    k(f"""
L_fin_nopf:
    s_lshr_b32 s34, s3, 1          ; di
    s_and_b32 s35, s3, 1           ; si
    s_lshl_b32 s31, s35, 10
    v_add_u32 v4, s31, v3
    v_bfe_u32 v8, v2, 2, 2
    v_lshrrev_b32 v5, 5, v2
    v_lshl_add_u32 v5, v5, 2, v8
    v_lshlrev_b32 v5, 7, v5
    v_bfe_u32 v6, v2, 4, 1
    v_lshl_add_u32 v5, v6, 5, v5
    v_and_b32 v6, 3, v2
    v_lshl_add_u32 v5, v6, 3, v5
    v_lshrrev_b32 v6, 1, v8
    v_lshl_add_u32 v5, v6, 6, v5
    s_lshl_b32 s31, s34, 6
    v_xor_b32 v5, s31, v5
    v_add_u32 v5, 16384, v5
    v_and_b32 v10, 31, v2
    v_lshlrev_b32 v10, 10, v10
    v_lshrrev_b32 v11, 5, v2
    v_lshl_add_u32 v10, v11, 4, v10
    s_lshl_b32 s37, s26, 16
    s_lshl_b32 s31, s35, 15
    s_add_u32 s37, s37, s31
    s_lshl_b32 s31, s27, 7
    s_add_u32 s37, s37, s31
    s_lshl_b32 s31, s34, 6
    s_add_u32 s37, s37, s31
    s_mov_b32 s33, 0
    """)
    stamp(k, 1)
    k("s_waitcnt vmcnt(0)")
    k(".p2align 3")
    k("L_fin_loop:")
    k("s_barrier")
    k("s_add_u32 s33, s33, 1")
    def rd(ks):
        b = ks & 3
        return [f"ds_read_b128 {vr(FO+4*b,4)}, v4 offset:{ks*2048}",
                f"ds_read_b64_tr_b16 {vr(FW+4*b,2)}, v5 offset:{ks*2048}",
                f"ds_read_b64_tr_b16 {vr(FW+4*b+2,2)}, v5 offset:{ks*2048+1024}"]
    for ks in range(4): k.emit(rd(ks))
    for ks in range(8):
        b = ks & 3
        rem = min(ks+4, 8) - (ks+1)
        k(f"s_waitcnt lgkmcnt({rem*3})")
        k("s_nop 0")
        k(f"v_mfma_f32_32x32x16_bf16 {vr(A,16)}, {vr(FW+4*b,4)}, {vr(FO+4*b,4)}, {vr(A,16)}")
        if ks + 4 < 8: k.emit(rd(ks+4))
    k(f"""
    v_add_u32 v4, 32768, v4
    v_add_u32 v5, 32768, v5
    s_cmp_lt_u32 s33, 4
    s_cbranch_scc1 L_fin_loop
    s_nop 12
    """)
    stamp(k, 2)
    B = FO
    for j in range(8): k(f"v_cvt_pk_bf16_f32 v{B+j}, v{A+2*j}, v{A+2*j+1}")
    k(f"""
    s_nop 1
    v_permlane32_swap_b32 v{B}, v{B+2}
    v_permlane32_swap_b32 v{B+1}, v{B+3}
    v_permlane32_swap_b32 v{B+4}, v{B+6}
    v_permlane32_swap_b32 v{B+5}, v{B+7}
    s_nop 1
    buffer_store_dwordx4 {vr(B,4)}, v10, s[44:47], s37 offen
    buffer_store_dwordx4 {vr(B+4,4)}, v10, s[44:47], s37 offen offset:32
    """)
    stamp_flush(k, 2, 3)
    k(f"{end}:")
    k("s_endpgm")
    return k

if __name__ == "__main__":
    ks = [k1(), k2(), k3()]
    if os.environ.get("NK"): ks = ks[:int(os.environ["NK"])]
    out = sys.argv[1] if len(sys.argv) > 1 else "gated_mix__softmax_full_mha__mixer_token_mlp__prompt.s"
    open(out, "w").write(build(ks))
```

```python
import sys, math, struct, os
from asmlib import *

NAME = "gated_mix__softmax_full_mha__mixer_token_mlp__prompt_kernel"
QF = 0x000000
KV = 0x200000
HF = 0x600000
UF = 0x800000
GF = 0x980000
F1 = 0xC00000
FH = 0xC20000
FU = 0xC30000
FO_ = 0xC80000
OF = 0xA00000
TS = 0xE00000
WS_BYTES = 0x10000000
UKS = 88
def f32(x): return f"{struct.unpack('<I', struct.pack('<f', x))[0]:#010x}"
LOG2E = 1.4426950408889634
STAMP = bool(os.environ.get("STAMP"))
OPT = os.environ.get("OPT", "")
SPIN = 0x40000
P_X, P_WQKV, P_WO, P_W1, P_B1, P_W2, P_B2, P_GW, P_OUT, P_DBG, P_WS = 36, 38, 40, 44, 46, 48, 50, 52, 54, 56, 58
NONCE = 35
KVP = 2064
MRING = 64*KVP
CNT = MRING + 4*6144
C_ALL, C_M, C_GO, C_NONCE, C_DONE, C_GO2, C_PUB, C_ST = 64, 68, 72, 76, 80, 84, 88, 96

def stamp(k, i):
    if not STAMP: return
    k(f"""
    s_memrealtime s[92:93]
    s_memtime s[94:95]
    s_waitcnt lgkmcnt(0)
    s_mov_b32 s{64+2*i}, s92
    s_mov_b32 s{65+2*i}, s94
    """)
def stamp_flush(k, n):
    if not STAMP: return
    k("s_waitcnt vmcnt(0)")
    stamp(k, n)
    k(f"""
    s_lshl_b32 s92, s2, 11
    s_lshl_b32 s93, s3, 7
    s_add_u32 s92, s92, s93
    s_add_u32 s92, s92, {TS}
    s_mov_b64 exec, 1
    v_mov_b32 v1, 0
    """)
    for i in range(2*n+2):
        k(f"v_mov_b32 v0, s{64+i}")
        k(f"buffer_store_dword v0, v1, s[20:23], s92 offen offset:{4*i}")

def lds_wait(k, vaddr, off, vt, target, sleep=1, st=4):
    l = k.lab("lw"); d = k.lab("lwd")
    k(f"""
{l}:
    ds_read_b32 v{vt}, v{vaddr} offset:{off}
    s_waitcnt lgkmcnt(0)
    v_readfirstlane_b32 s{st}, v{vt}
    s_cmp_ge_u32 s{st}, {target}
    s_cbranch_scc1 {d}
    s_sleep {sleep}
    s_branch {l}
{d}:
    """)
def lds_add(k, vaddr, vone, offs):
    k("s_mov_b64 exec, 1")
    for o in offs: k(f"ds_add_u32 v{vaddr}, v{vone} offset:{o}")
    k("s_mov_b64 exec, -1")
def flag_poll(k, voff, soff, vt, sleep=2, sc=5):
    l = k.lab("fp"); d = k.lab("fpd")
    k(f"""
    s_mov_b32 s{sc}, 0
{l}:
    buffer_load_dword v{vt}, v{voff}, s[20:23], s{soff} offen sc1
    s_add_u32 s{sc}, s{sc}, 1
    s_waitcnt vmcnt(0)
    v_cmp_ne_u32 vcc, s{NONCE}, v{vt}
    s_and_b64 exec, exec, vcc
    s_cbranch_scc0 {d}
    s_sleep {sleep}
    s_cmp_lt_u32 s{sc}, {SPIN}
    s_cbranch_scc1 {l}
{d}:
    s_mov_b64 exec, -1
    """)
def flag_store(k, soff, va, vb):
    k(f"""
    v_mov_b32 v{va}, 0
    v_mov_b32 v{vb}, s{NONCE}
    s_waitcnt vmcnt(0)
    s_mov_b64 exec, 1
    buffer_store_dword v{vb}, v{va}, s[20:23], s{soff} offen sc1
    s_mov_b64 exec, -1
    """)
def get_nonce(k, vz, vt):
    k(f"""
    ds_read_b32 v{vt}, v{vz} offset:{C_NONCE}
    s_waitcnt lgkmcnt(0)
    v_readfirstlane_b32 s{NONCE}, v{vt}
    """)

class MG:
    ACC = 16; FO = 80; RF = 112
    vL0 = 3; vL1 = 4; vDma = 5; vTr = 6
    vZ = 8; vOne = 9; vRd = 10; vWr = 13; vL16 = 14
    T = 128
def tr_addr(k, dst, sigma, a, c):
    k(f"""
    v_bfe_u32 v{a}, v2, 2, 2
    v_lshrrev_b32 v{dst}, 5, v2
    v_lshl_add_u32 v{dst}, v{dst}, {2 if sigma else 3}, v{a}
    v_lshlrev_b32 v{dst}, 7, v{dst}
    v_bfe_u32 v{c}, v2, 4, 1
    v_lshl_add_u32 v{dst}, v{c}, 5, v{dst}
    v_and_b32 v{c}, 3, v2
    v_lshl_add_u32 v{dst}, v{c}, 3, v{dst}
    v_lshrrev_b32 v{c}, 1, v{a}
    v_lshl_add_u32 v{dst}, v{c}, 6, v{dst}
    """)
def mg_tr_setup(k, sigma, gx):
    a, b, c = MG.T, MG.T+1, MG.T+2
    tr_addr(k, b, sigma, a, c)
    k(f"""
    v_xor_b32 v{b}, s{gx}, v{b}
    v_add_u32 v{MG.vTr}, s30, v{b}
    v_xor_b32 v{b}, 64, v{b}
    v_add_u32 v{MG.vTr+1}, s30, v{b}
    """)
def dma_addr(k, vdst, pitch, a, b):
    k(f"""
    v_lshrrev_b32 v{a}, 3, v2
    v_mul_u32_u24 v{vdst}, {pitch}, v{a}
    v_bfe_u32 v{a}, v2, 4, 1
    v_lshlrev_b32 v{a}, 2, v{a}
    v_and_b32 v{b}, 7, v2
    v_xor_b32 v{a}, v{a}, v{b}
    v_lshl_add_u32 v{vdst}, v{a}, 4, v{vdst}
    """)
class Seg:
    def __init__(self, nsteps, ring_srd, s_ring, pitch, s_fo, ring_is_A, sigma, fo_flags=""):
        self.__dict__.update(locals())
    def ring(self, j):
        sl = j % 3
        return ([f"s_add_u32 m0, s30, {sl*2048}",
                 f"s_add_u32 s31, s{self.s_ring}, {8*self.pitch}",
                 f"buffer_load_dwordx4 v{MG.vDma}, s[{self.ring_srd}:{self.ring_srd+3}], s{self.s_ring} offen lds"],
                [f"s_add_u32 m0, s30, {sl*2048+1024}",
                 f"s_add_u32 s{self.s_ring}, s{self.s_ring}, {16*self.pitch}",
                 f"buffer_load_dwordx4 v{MG.vDma}, s[{self.ring_srd}:{self.ring_srd+3}], s31 offen lds"])
    def fo(self, j):
        sl = j % 4
        return [f"buffer_load_dwordx4 {vr(MG.FO+sl*8,4)}, v{MG.vL0}, s[20:23], s{self.s_fo} offen{self.fo_flags}",
                f"buffer_load_dwordx4 {vr(MG.FO+sl*8+4,4)}, v{MG.vL1}, s[20:23], s{self.s_fo} offen{self.fo_flags}",
                f"s_add_u32 s{self.s_fo}, s{self.s_fo}, 2048"]
    def group(self, j):
        r = self.ring(j); return r[0] + r[1] + self.fo(j)
    def trs(self, j):
        sl = j % 3; buf = j & 1
        ustep = 1024 if self.sigma else 512
        return [f"ds_read_b64_tr_b16 {vr(MG.RF+buf*8+g*4+u*2,2)}, v{MG.vTr+g} offset:{sl*2048+u*ustep}" for g in range(2) for u in range(2)]
    def mfmas(self, j):
        sl = j % 4; buf = j & 1
        out = []
        for mi in range(2):
            for ni in range(2):
                a = MG.ACC + (mi*2+ni)*16
                if self.ring_is_A: A = vr(MG.RF+buf*8+mi*4, 4); B = vr(MG.FO+sl*8+ni*4, 4)
                else:              A = vr(MG.FO+sl*8+mi*4, 4); B = vr(MG.RF+buf*8+ni*4, 4)
                out.append(f"v_mfma_f32_32x32x16_bf16 {vr(a,16)}, {A}, {B}, {'0' if j == 0 else vr(a,16)}")
        return out
    def run(self, k):
        n = self.nsteps
        for j in range(3): k.emit(self.group(j))
        k("s_waitcnt vmcnt(10)")
        k.emit(self.trs(0))
        k("s_waitcnt lgkmcnt(0)")
        k.emit(self.group(3))
        for i in range(n):
            last = min(i+3, n-1)
            m = self.mfmas(i)
            if i + 1 < n:
                k(f"s_waitcnt vmcnt({2 + 4*(last-(i+1))})")
                k.emit(self.trs(i+1))
            else:
                k("s_waitcnt vmcnt(0)")
            more = i + 4 < n
            k(m[0])
            if i + 1 < n: k("s_waitcnt lgkmcnt(0)")
            k(m[1])
            if more: k.emit(self.ring(i+4)[0])
            k(m[2])
            if more: k.emit(self.ring(i+4)[1])
            k(m[3])
            if more: k.emit(self.fo(i+4))
def mbar(k):
    k("s_waitcnt lgkmcnt(0)")
    lds_add(k, MG.vZ, MG.vOne, [C_M])
    k("s_add_u32 s34, s34, 4")
    l = k.lab("mbar")
    k(f"""
{l}:
    ds_read_b32 v{MG.T}, v{MG.vZ} offset:{C_M}
    s_waitcnt lgkmcnt(0)
    v_readfirstlane_b32 s4, v{MG.T}
    s_cmp_lt_u32 s4, s34
    s_cbranch_scc1 {l}
    """)
def mg_reduce(k):
    A = MG.ACC; T = MG.FO
    k("s_nop 15")
    for h in range(2):
        for r in range(1, 4):
            for q in range(2):
                k(f"ds_write_b128 v{MG.vWr}, {vr(A+r*16+(2*h+q)*4,4)} offset:{(r-1)*2048+q*1024}")
        mbar(k)
        for r in range(1, 4):
            for q in range(2):
                k(f"ds_read_b128 {vr(T+((r-1)*2+q)*4,4)}, v{MG.vRd+r-1} offset:{(r-1)*2048+q*1024}")
        if h == 0: mbar(k)
        else: k("s_waitcnt lgkmcnt(0)")
        for j in range(8):
            k(f"v_add_f32 v{T+j}, v{T+j}, v{T+8+j}")
            k(f"v_add_f32 v{A+8*h+j}, v{A+8*h+j}, v{T+16+j}")
        for j in range(8):
            k(f"v_add_f32 v{A+8*h+j}, v{A+8*h+j}, v{T+j}")

def fused():
    k = Kern(NAME, 256, 768, 163840, nvgpr=144, nsgpr=96)
    k.name_short = "f"
    end = "L_end"
    k(f"""
    s_cmp_ge_u32 s2, 256
    s_cbranch_scc1 {end}
    s_load_dwordx16 s[36:51], s[0:1], 0
    s_load_dwordx8 s[52:59], s[0:1], 64
    v_lshrrev_b32 v1, 6, v0
    v_and_b32 v2, 63, v0
    v_readfirstlane_b32 s3, v1
    s_and_b32 s24, s2, 7
    s_lshr_b32 s25, s2, 3          ; i
    s_cmp_lg_u32 s3, 11
    s_cbranch_scc1 L_nopf
    s_getpc_b64 s[4:5]
L_pc:
    v_lshlrev_b32 v136, 7, v2
    global_load_dword v137, v136, s[4:5]
    v_add_u32 v136, 8192, v136
    global_load_dword v137, v136, s[4:5]
    v_add_u32 v136, 8192, v136
    v_min_u32 v136, {end}-L_pc-4, v136
    global_load_dword v137, v136, s[4:5]
L_nopf:
    """)
    stamp(k, 0)
    k(f"""
    s_lshr_b32 s26, s24, 1
    s_lshl_b32 s26, s26, 3
    s_and_b32 s6, s25, 7
    s_add_u32 s26, s26, s6         ; tb 0..31
    s_and_b32 s27, s24, 1
    s_lshl_b32 s27, s27, 2
    s_lshr_b32 s7, s25, 3
    s_add_u32 s27, s27, s7         ; hq 0..7
    s_cmp_lt_u32 s3, 4
    s_cbranch_scc1 L_comp
    s_cmp_ge_u32 s3, 8
    s_cbranch_scc1 L_m_start
    s_sub_u32 s33, s3, 4           ; lw
    s_lshl_b32 s28, s26, 16
    s_lshl_b32 s29, s33, 14
    s_add_u32 s28, s28, s29
    s_mul_i32 s29, s33, {16*3072}
    s_lshl_b32 s30, s27, 7
    s_add_u32 s29, s29, s30        ; w off
    s_lshl_b32 s30, s33, 11
    v_lshrrev_b32 v3, 3, v2
    v_lshlrev_b32 v3, 10, v3
    v_lshrrev_b32 v4, 4, v2
    v_and_b32 v5, 7, v2
    v_xor_b32 v5, v5, v4
    v_lshl_add_u32 v3, v5, 4, v3   ; vXe
    v_xor_b32 v6, 64, v3           ; vXo
    """)
    dma_addr(k, 7, 3072, 4, 5)
    k(f"""
    s_lshl_b32 s8, s7, 1
    s_add_u32 s8, s8, s6
    s_and_b32 s8, s8, 7            ; rotation
    s_mov_b32 s9, 0
    s_waitcnt lgkmcnt(0)
    """)
    srd(k, 12, P_X, 2048*512*2)
    srd(k, 16, P_WQKV, 512*1536*2)
    k(f"""
L_ld:
    s_cmp_lt_u32 s9, 2
    s_cbranch_scc1 L_ld_issue
    s_cmp_eq_u32 s9, 3
    s_cbranch_scc1 L_ld_issue
    s_cmp_eq_u32 s9, 2
    s_cbranch_scc0 L_ld_w16
    s_waitcnt vmcnt(8)
L_ld_w16:
    s_waitcnt vmcnt(16)
    s_barrier
L_ld_issue:
    s_lshl_b32 s10, s8, 7
    s_add_u32 s10, s10, s28
    s_mul_i32 s11, s8, {64*3072}
    s_add_u32 s11, s11, s29
    """)
    for i in range(2):
        k(f"""
        s_add_u32 m0, s30, {i*1024}
        s_add_u32 s31, s10, {i*8192}
        buffer_load_dwordx4 v{6 if i else 3}, s[12:15], s31 offen lds
        """)
        for ty in range(3):
            k(f"""
            s_add_u32 m0, s30, {8192 + ty*8192 + i*1024}
            s_add_u32 s31, s11, {8*i*3072 + ty*1024}
            buffer_load_dwordx4 v7, s[16:19], s31 offen lds
            """)
    k(f"""
    s_add_u32 s30, s30, 32768
    s_and_b32 s30, s30, 0x1ffff
    s_add_u32 s8, s8, 1
    s_and_b32 s8, s8, 7
    s_add_u32 s9, s9, 1
    s_cmp_lt_u32 s9, 8
    s_cbranch_scc1 L_ld
    """)
    srd(k, 12, P_W1, 2048*1376*2)
    srd(k, 20, P_WS, WS_BYTES)
    NT1 = 0 if "p" in OPT else 2
    k(f"""
    s_lshr_b32 s10, s24, 1
    s_mul_i32 s10, s10, 22
    s_lshr_b32 s10, s10, 2
    s_lshl_b32 s10, s10, 7         ; ft_lo*128
    s_lshl_b32 s11, s25, 2
    s_add_u32 s11, s11, s33
    s_mul_i32 s11, s11, {16*2752}
    s_add_u32 s10, s10, s11
    v_lshrrev_b32 v4, 3, v2
    v_mul_u32_u24 v4, 2752, v4
    v_and_b32 v5, 7, v2
    v_lshlrev_b32 v5, 7, v5
    v_min_u32 v5, 764, v5
    v_add_u32 v4, v4, v5
    s_add_u32 s11, s10, {8*2752}
    """)
    if NT1:
        k("buffer_load_dword v8, v4, s[12:15], s10 offen")
        k("buffer_load_dword v8, v4, s[12:15], s11 offen")
    k(f"""
    s_waitcnt vmcnt({16+NT1})
    s_barrier
    s_waitcnt vmcnt({8+NT1})
    s_barrier
    s_waitcnt vmcnt({NT1})
    s_barrier
    s_barrier
    s_branch L_attn
    """)
    vXa = 8; vWa = 12
    ACC = 32; FX = 80; FW = 88
    k(f"""
L_comp:
    s_and_b32 s32, s3, 1           ; tg
    s_lshr_b32 s33, s3, 1          ; hp
    v_and_b32 v14, 31, v2
    v_lshrrev_b32 v15, 5, v2
    v_lshrrev_b32 v16, 1, v14
    v_and_b32 v16, 7, v16
    s_lshl_b32 s8, s32, 12
    v_lshl_add_u32 v17, v14, 7, s8
    """)
    for ks in range(4):
        k(f"""
        v_add_u32 v18, {2*ks}, v15
        v_xor_b32 v18, v18, v16
        v_lshl_add_u32 v{vXa+ks}, v18, 4, v17
        """)
    tr_addr(k, vWa, False, 16, 17)
    k(f"""
    s_lshl_b32 s8, s33, 6
    v_xor_b32 v{vWa}, s8, v{vWa}
    v_add_u32 v{vWa}, 8192, v{vWa}
    """)
    for i in range(48): k(f"v_mov_b32 v{ACC+i}, 0")
    k(f"""
    v_lshlrev_b32 v20, 4, v2
    v_and_b32 v21, 0x33, v2
    v_bfe_u32 v23, v2, 2, 1
    v_lshl_or_b32 v21, v23, 3, v21
    v_bfe_u32 v23, v2, 3, 1
    v_lshl_or_b32 v21, v23, 2, v21
    v_lshlrev_b32 v21, 4, v21
    v_bfe_u32 v22, v2, 4, 1
    v_lshlrev_b32 v22, 17, v22
    v_lshl_add_u32 v22, v15, 9, v22
    v_and_b32 v23, 15, v2
    v_lshl_add_u32 v22, v23, 4, v22
    s_lshl_b32 s8, s27, 1
    s_add_u32 s8, s8, s33
    s_lshl_b32 s9, s26, 1
    s_add_u32 s9, s9, s32          ; tile
    s_lshl_b32 s28, s8, 17
    s_lshl_b32 s10, s9, 10
    s_add_u32 s28, s28, s10
    s_lshl_b32 s29, s28, 1
    s_add_u32 s29, s29, {KV}       ; K off
    s_lshl_b32 s30, s8, 13
    s_lshl_b32 s10, s9, 7
    s_add_u32 s30, s30, s10
    s_add_u32 s30, s30, {F1}
    s_mov_b32 s10, {f32(0.25*LOG2E)}
    s_mov_b32 s11, s10
    s_waitcnt lgkmcnt(0)
    """)
    srd(k, 20, P_WS, WS_BYTES)
    def reads(sl, ks, buf):
        out = [f"ds_read_b128 {vr(FX+buf*4,4)}, v{vXa+ks} offset:{sl*32768}"]
        for ty in range(3):
            for u in range(2):
                out.append(f"ds_read_b64_tr_b16 {vr(FW+buf*12+ty*4+u*2,2)}, v{vWa} offset:{sl*32768+ty*8192+ks*2048+u*512}")
        return out
    stamp(k, 1)
    k("s_barrier")
    stamp(k, 2)
    k.emit(reads(0, 0, 0))
    k("s_mov_b32 s9, 0")
    k(".p2align 3")
    k("L_qloop:")
    for sl in range(2):
        for ks in range(4):
            buf = ks & 1
            def mf():
                x = vr(FX+buf*4, 4)
                for ty in range(3):
                    a = ACC + ty*16; w = vr(FW+buf*12+ty*4, 4)
                    if ty == 2: k(f"v_mfma_f32_32x32x16_bf16 {vr(a,16)}, {x}, {w}, {vr(a,16)}")
                    else:       k(f"v_mfma_f32_32x32x16_bf16 {vr(a,16)}, {w}, {x}, {vr(a,16)}")
            if ks < 3:
                k.emit(reads(sl, ks+1, buf ^ 1))
                k("s_waitcnt lgkmcnt(7)")
                k("s_nop 0")
                mf()
            elif sl == 0:
                k("s_waitcnt lgkmcnt(0)")
                k("s_barrier")
                k.emit(reads(1, 0, buf ^ 1))
                mf()
            else:
                for r in range(vXa, vXa+5): k(f"v_xor_b32 v{r}, 0x10000, v{r}")
                k(f"""
                s_add_u32 s9, s9, 1
                s_cmp_ge_u32 s9, 4
                s_waitcnt lgkmcnt(0)
                s_barrier
                s_cbranch_scc1 L_qlast
                s_nop 0
                """)
                k.emit(reads(0, 0, buf ^ 1))
                mf()
                k("s_branch L_qloop")
                k("L_qlast:")
                mf()
    k(f"v_mov_b32 v24, {CNT}")
    get_nonce(k, 24, 25)
    k("s_nop 8")
    stamp(k, 3)
    for ty in (1, 2, 0):
        a = ACC + ty*16
        if ty == 0:
            for r in range(0, 16, 2): k(f"v_pk_mul_f32 {vr(a+r,2)}, {vr(a+r,2)}, s[10:11]")
        for half in range(2):
            d = FX + (ty*2+half)*4
            for j in range(4):
                k(f"v_cvt_pk_bf16_f32 v{d+j}, v{a+half*8+2*j}, v{a+half*8+2*j+1}")
            if ty == 0:
                k(f"s_add_u32 s31, s28, {half*65536}")
                k(f"buffer_store_dwordx4 {vr(d,4)}, v20, s[20:23], s31 offen sc1")
            elif ty == 1:
                k(f"s_add_u32 s31, s29, {half*131072}")
                k(f"buffer_store_dwordx4 {vr(d,4)}, v21, s[20:23], s31 offen sc1")
            else:
                k(f"buffer_store_dwordx4 {vr(d,4)}, v22, s[20:23], s29 offen offset:{1024+half*256} sc1")
    stamp(k, 4)
    flag_store(k, 30, 24, 25)
    k(f"v_mov_b32 v26, {CNT}")
    k("v_mov_b32 v27, 1")
    lds_add(k, 26, 27, [C_PUB])
    Q, C, O, S0, S1, K0, K1, V0a, V0b, V1 = 4, 8, 24, 40, 56, 72, 76, 80, 84, 88
    IDX, AK, AV0, AV1, T0, T1, VZ, VC, L16, ONE = 92, 93, 94, 95, 96, 97, 98, 99, 100, 101
    S = [S0, S1]; V0 = [V0a, V0b]; KF = [K0, K1]
    k(f"""
L_attn:
    s_lshl_b32 s26, s24, 2
    s_lshr_b32 s27, s25, 3
    s_add_u32 s26, s26, s27        ; head
    s_and_b32 s27, s25, 7
    s_lshl_b32 s27, s27, 3
    s_add_u32 s27, s27, s3         ; qtile
    v_lshlrev_b32 v{L16}, 4, v2
    s_lshl_b32 s28, s26, 17
    s_lshl_b32 s29, s3, 12
    s_add_u32 s28, s28, s29
    s_add_u32 s28, s28, {KV}
    s_mul_i32 s29, s3, {2*KVP}
    s_lshl_b32 s30, s26, 16
    s_lshl_b32 s31, s27, 10
    s_add_u32 s30, s30, s31        ; Q off
    v_mov_b32 v{IDX}, 0xdddddddd
    v_mov_b32 v{VZ}, {CNT}
    v_mov_b32 v{VC}, {CNT + 4}
    v_mov_b32 v{ONE}, 1
    s_mov_b32 s8, 0
    s_mov_b32 s9, 0
    """)
    stamp(k, 5)
    k(f"""
    s_cmp_lg_u32 s3, 4
    s_cbranch_scc1 L_a_wait
    v_mul_u32_u24 v{T0}, {KVP}, v2
    v_mov_b32 v{S0}, 0x3f803f80
    v_mov_b32 v{S0+1}, 0x3f803f80
    v_mov_b32 v{S0+2}, 0x3f803f80
    v_mov_b32 v{S0+3}, 0x3f803f80
    ds_write_b128 v{T0}, {vr(S0,4)} offset:2048
    """)
    get_nonce(k, VZ, T0)
    k(f"""
    s_lshr_b32 s31, s26, 1
    s_lshl_b32 s31, s31, 13
    s_add_u32 s31, s31, {F1}
    v_lshlrev_b32 v{T1}, 7, v2
    """)
    lds_wait(k, VZ, C_PUB, T0, 4)
    flag_poll(k, T1, 31, T0)
    lds_add(k, VZ, ONE, [C_GO])
    k("s_branch L_a_go")
    k("L_a_wait:")
    get_nonce(k, VZ, T0)
    lds_wait(k, VZ, C_GO, T0, 1)
    k("L_a_go:")
    stamp(k, 6)
    def kvdma(c):
        out = []
        for i in range(2):
            out += [f"s_add_u32 m0, s29, {(8*c+i)*KVP}",
                    f"s_add_u32 s32, s28, {(8*c+i)*2048}",
                    f"buffer_load_dwordx4 v{L16}, s[20:23], s32 offen sc1 lds",
                    f"buffer_load_dwordx4 v{L16}, s[20:23], s32 offen offset:1024 sc1 lds"]
        return out
    k(f"buffer_load_dwordx4 {vr(Q,4)}, v{L16}, s[20:23], s30 offen sc1")
    k.emit(kvdma(0))
    k(f"""
    s_cmp_ge_u32 s3, 4
    s_cbranch_scc1 L_a_young
    s_waitcnt vmcnt(0)
    """)
    lds_add(k, VZ, ONE, [0])
    k("s_branch L_a_c0")
    k("L_a_young:")
    k.emit(kvdma(1))
    for c in range(1, 8):
        if c + 2 <= 7:
            k.emit(kvdma(c+1))
            k("s_waitcnt vmcnt(8)")
        else:
            k(f"s_waitcnt vmcnt({(7-c)*4})")
        lds_add(k, VZ, ONE, [4*c, C_ALL])
    k("L_a_c0:")
    lds_wait(k, VZ, 0, T0, 4, sleep=0)
    stamp(k, 7)
    k(f"""
    ds_read_b128 {vr(K0,4)}, v{L16}
    s_waitcnt lgkmcnt(0)
    v_mfma_f32_32x32x16_bf16 {vr(S0,16)}, {vr(K0,4)}, {vr(Q,4)}, 0
    s_nop 15
    v_max3_f32 v{T0}, v{S0}, v{S0+1}, v{S0+2}
    """)
    for j in range(3, 15, 2): k(f"v_max3_f32 v{T0}, v{T0}, v{S0+j}, v{S0+j+1}")
    k(f"v_max_f32 v{T0}, v{T0}, v{S0+15}")
    k("L_a_setmax:")
    k(f"""
    v_mov_b32 v{T1}, v{T0}
    v_mov_b32 v{AK}, v{L16}
    v_and_b32 v{C}, 16, v2
    v_permlane32_swap_b32 v{T0}, v{T1}
    v_cmp_eq_u32 vcc, 0, v{C}
    v_mov_b32 v{C}, 1024
    v_mov_b32 v{C+1}, 768
    v_max_f32 v{T0}, v{T0}, v{T1}
    v_cndmask_b32 v{AV0}, v{C}, v{L16}, vcc
    v_cndmask_b32 v{AV1}, v{C+1}, v{L16}, vcc
    s_nop 0
    ds_read_b128 {vr(K0,4)}, v{AK}
    ds_read_b128 {vr(V0a,4)}, v{AV0} offset:1024
    ds_read_b128 {vr(V1,4)}, v{AV0} offset:1024
    ds_read_b128 {vr(K1,4)}, v{AK} offset:{KVP}
    """)
    for r in range(16): k(f"v_sub_f32 v{C+r}, 0, v{T0}")
    for r in range(16): k(f"v_mov_b32 v{O+r}, 0")
    for r in range(8): k(f"v_mov_b32 v{S1+8+r}, 0")
    k(f"""
    s_waitcnt lgkmcnt(0)
    v_mfma_f32_32x32x16_bf16 {vr(S0,16)}, {vr(K0,4)}, {vr(Q,4)}, {vr(C,16)}
    ds_read_b128 {vr(K0,4)}, v{AK} offset:{2*KVP}
    s_mov_b32 s33, 0
    s_setprio 2
    s_nop 10
    """)
    k(".p2align 6")
    k("L_a_loop:")
    NT = 16
    for t in range(NT):
        cur = S[t & 1]; prv = S[(t+1) & 1]
        e = lambda a, b: [f"v_exp_f32 v{cur+i}, v{cur+i}" for i in range(a, b)]
        k.emit(e(0, 2))
        k(f"v_smfmac_f32_32x32x32_bf16 {vr(O,16)}, {vr(V1,4)}, {vr(prv+8,8)}, v{IDX}")
        k(f"ds_read_b128 {vr(V1,4)}, v{AV1} offset:{t*KVP+1024+256}")
        k(f"ds_read_b128 {vr(V0[(t+1)&1],4)}, v{AV0} offset:{(t+1)*KVP+1024}")
        k.emit(e(2, 6))
        k(f"v_mfma_f32_32x32x16_bf16 {vr(prv,16)}, {vr(KF[(t+1)&1],4)}, {vr(Q,4)}, {vr(C,16)}")
        k(f"ds_read_b128 {vr(KF[(t+1)&1],4)}, v{AK} offset:{(t+3)*KVP}")
        k.emit(e(6, 12))
        k(f"v_smfmac_f32_32x32x32_bf16 {vr(O,16)}, {vr(V0[t&1],4)}, {vr(cur,8)}, v{IDX}")
        k("s_waitcnt lgkmcnt(1)")
        if t % 8 == 4: k("s_cmp_lg_u32 s9, 0")
        elif t == 8: k("s_cmp_lg_u32 s33, 2")
        elif t == 13: k("s_cmp_lg_u32 s33, 3")
        elif t == NT-2: k("s_add_u32 s33, s33, 1")
        elif t == NT-1: k(f"s_cmp_lt_u32 s33, {64//NT}")
        else: k("s_nop 0")
        k.emit(e(12, 16))
        if t % 8 == 4:
            sk = k.lab("rdy"); pl = k.lab("poll")
            k(f"""
            s_cbranch_scc1 {sk}
{pl}:
            ds_read_b32 v{T0}, v{VC}
            ds_read_b32 v{T1}, v{VZ} offset:{C_ALL}
            s_waitcnt lgkmcnt(0)
            v_readfirstlane_b32 s4, v{T0}
            v_readfirstlane_b32 s5, v{T1}
            s_cmp_lt_u32 s4, 4
            s_cbranch_scc1 {pl}
            s_cmp_ge_u32 s5, 28
            s_cselect_b32 s9, 1, 0
            v_add_u32 v{VC}, 4, v{VC}
            .p2align 3
{sk}:
            """)
        if t in (8, 13):
            sk = k.lab("lad")
            k(f"""
            s_cbranch_scc1 {sk}
            s_setprio {1 if t == 8 else 0}
{sk}:
            """)
    k(f"""
    v_add_u32 v{AK}, {NT*KVP}, v{AK}
    v_add_u32 v{AV0}, {NT*KVP}, v{AV0}
    v_add_u32 v{AV1}, {NT*KVP}, v{AV1}
    s_cbranch_scc1 L_a_loop
    v_smfmac_f32_32x32x32_bf16 {vr(O,16)}, {vr(V1,4)}, {vr(S1+8,8)}, v{IDX}
    s_waitcnt lgkmcnt(0)
    s_setprio 3
    s_nop 15
    s_cmp_lg_u32 s8, 0
    s_cbranch_scc1 L_a_fin
    v_max3_f32 v{T0}, abs(v{O}), abs(v{O+1}), abs(v{O+2})
    v_max3_f32 v{T0}, v{T0}, abs(v{O+3}), abs(v{O+4})
    v_max3_f32 v{T0}, v{T0}, abs(v{O+5}), abs(v{O+6})
    v_max_f32 v{T0}, v{T0}, abs(v{O+7})
    v_add_f32 v{T1}, v{O}, v{O+1}
    v_add_f32 v{T1}, v{T1}, v{O+2}
    v_add_f32 v{T1}, v{T1}, v{O+3}
    v_add_f32 v{T1}, v{T1}, v{O+4}
    v_add_f32 v{T1}, v{T1}, v{O+5}
    v_add_f32 v{T1}, v{T1}, v{O+6}
    v_add_f32 v{T1}, v{T1}, v{O+7}
    s_mov_b32 s4, {f32(2.0**40)}
    s_mov_b32 s5, {f32(2.0**120)}
    v_cmp_gt_f32 vcc, s4, v{O+8}
    v_cmp_gt_f32 s[6:7], s5, v{T0}
    v_cmp_o_f32 s[10:11], v{T1}, v{T1}
    s_and_b64 vcc, vcc, s[6:7]
    s_and_b64 vcc, vcc, s[10:11]
    s_cmp_eq_u64 vcc, exec
    s_cbranch_scc1 L_a_fin
    s_mov_b32 s8, 1
    s_mov_b32 s9, 1
    v_mov_b32 v{AK}, v{L16}
    v_mov_b32 v{T0}, 0xff800000
    s_mov_b32 s33, 0
L_a_maxloop:
    ds_read_b128 {vr(K0,4)}, v{AK}
    s_waitcnt lgkmcnt(0)
    v_mfma_f32_32x32x16_bf16 {vr(S0,16)}, {vr(K0,4)}, {vr(Q,4)}, 0
    v_add_u32 v{AK}, {KVP}, v{AK}
    s_nop 15
    """)
    for j in range(0, 16, 2): k(f"v_max3_f32 v{T0}, v{T0}, v{S0+j}, v{S0+j+1}")
    k(f"""
    s_add_u32 s33, s33, 1
    s_cmp_lt_u32 s33, 64
    s_cbranch_scc1 L_a_maxloop
    s_branch L_a_setmax
L_a_fin:
    v_rcp_f32 v{T0}, v{O+8}
    """)
    lds_add(k, VZ, ONE, [C_DONE])
    stamp(k, 8)
    k(f"""
    s_lshr_b32 s4, s27, 1
    s_lshl_b32 s4, s4, 6
    s_lshl_b32 s5, s26, 1
    s_add_u32 s4, s4, s5
    s_and_b32 s5, s27, 1
    s_add_u32 s4, s4, s5           ; (st*32+h)*2+sg
    s_lshl_b32 s30, s4, 10
    s_add_u32 s30, s30, {OF}
    s_lshl_b32 s31, s4, 7
    s_add_u32 s31, s31, {FO_}
    """)
    for r in range(8): k(f"v_mul_f32 v{O+r}, v{O+r}, v{T0}")
    for j in range(4): k(f"v_cvt_pk_bf16_f32 v{K0+j}, v{O+2*j}, v{O+2*j+1}")
    k(f"buffer_store_dwordx4 {vr(K0,4)}, v{L16}, s[20:23], s30 offen sc1")
    flag_store(k, 31, T0, T1)
    stamp(k, 9)
    k(f"""
    s_cmp_ge_u32 s3, 4
    s_cbranch_scc1 L_f_load
    """)
    stamp(k, 10); stamp(k, 11)
    stamp_flush(k, 12)
    k("s_endpgm")
    def final_ids(k):
        k(f"""
        s_lshr_b32 s26, s24, 1
        s_lshl_b32 s26, s26, 3
        s_lshr_b32 s27, s25, 2
        s_add_u32 s26, s26, s27
        s_and_b32 s27, s24, 1
        s_lshl_b32 s27, s27, 2
        s_and_b32 s4, s25, 3
        s_add_u32 s27, s27, s4
        """)
    k("L_f_load:")
    final_ids(k)
    srd(k, 12, P_WO, 512*512*2)
    dma_addr(k, 4, 1024, 5, 6)
    k(f"""
    s_sub_u32 s33, s3, 4
    s_lshl_b32 s30, s33, 12
    s_lshl_b32 s28, s26, 16
    s_add_u32 s28, s28, s30
    s_add_u32 s28, s28, {OF}
    s_lshl_b32 s29, s33, 15
    s_lshl_b32 s31, s27, 7
    s_add_u32 s29, s29, s31
    """)
    lds_wait(k, VZ, C_DONE, T0, 8)
    for j in range(4):
        for i in range(4):
            k(f"s_add_u32 m0, s30, {j*32768 + 16384 + i*1024}")
            k(f"s_add_u32 s31, s29, {j*131072 + i*8192}")
            k(f"buffer_load_dwordx4 v4, s[12:15], s31 offen lds")
    stamp(k, 10)
    k(f"""
    s_cmp_lg_u32 s3, 4
    s_cbranch_scc1 L_f_wait
    s_lshl_b32 s31, s26, 13
    s_add_u32 s31, s31, {FO_}
    v_lshlrev_b32 v{T1}, 7, v2
    """)
    flag_poll(k, T1, 31, T0, sleep=1)
    lds_add(k, VZ, ONE, [C_GO2])
    k("s_branch L_f_go")
    k("L_f_wait:")
    lds_wait(k, VZ, C_GO2, T0, 1, sleep=0)
    k("L_f_go:")
    stamp(k, 11)
    for j in range(4):
        k(f"s_add_u32 m0, s30, {j*32768}")
        k(f"s_add_u32 s31, s28, {j*16384}")
        for i in range(4):
            k(f"buffer_load_dwordx4 v{L16}, s[20:23], s31 offen offset:{i*1024} sc1 lds")
    for j in range(4):
        k(f"s_waitcnt vmcnt({12-4*j})")
        lds_add(k, VZ, ONE, [C_ST+4*j])
    stamp_flush(k, 12)
    k("s_endpgm")

    A = MG.ACC
    XR = 16; GR = 24; XF = 32; GW = 48; RS = 56; PK = 64
    k(f"""
L_m_start:
    s_sub_u32 s33, s3, 8           ; mw
    s_lshl_b32 s28, s26, 6
    s_lshl_b32 s29, s27, 3
    s_add_u32 s28, s28, s29
    s_lshl_b32 s29, s33, 1
    s_add_u32 s29, s29, s28
    s_lshl_b32 s31, s29, 10
    v_lshlrev_b32 v{MG.vL16}, 4, v2
    v_mov_b32 v{MG.vZ}, {CNT}
    v_mov_b32 v{MG.vOne}, 1
    v_mov_b32 v15, 0
    s_waitcnt lgkmcnt(0)
    """)
    srd(k, 12, P_X, 2048*512*2)
    srd(k, 16, P_GW, 1024)
    k(f"""
    buffer_load_dwordx4 {vr(XR,4)}, v{MG.vL16}, s[12:15], s31 offen
    buffer_load_dwordx4 {vr(XR+4,4)}, v{MG.vL16}, s[12:15], s31 offen offset:1024
    buffer_load_dwordx4 {vr(GR,4)}, v{MG.vL16}, s[16:19], 0 offen
    """)
    srd(k, 20, P_WS, WS_BYTES)
    srd(k, 60, P_DBG, 256)
    k(f"""
    s_cmp_lg_u32 s33, 1
    s_cbranch_scc1 L_m_i1
    s_cmp_lg_u32 s2, 0
    s_cbranch_scc1 L_m_i1
    s_memrealtime s[4:5]
    s_waitcnt lgkmcnt(0)
    s_or_b32 s4, s4, 1
    v_mov_b32 v136, s4
    s_mov_b64 exec, 1
    buffer_store_dword v136, v15, s[60:63], 0 offen sc1
    s_mov_b64 exec, -1
L_m_i1:
    s_cmp_lg_u32 s33, 0
    s_cbranch_scc1 L_m_i2
    v_lshlrev_b32 v136, 2, v2
    v_add_u32 v136, {CNT}, v136
    v_cmp_eq_u32 vcc, 8, v2
    v_mov_b32 v138, 4
    s_nop 0
    v_cndmask_b32 v138, 0, v138, vcc
    ds_write_b32 v136, v138
L_m_i2:
    s_mul_i32 s30, s33, 6144
    s_add_u32 s30, s30, {MRING}
    s_mov_b32 s34, 0
    v_add_u32 v{MG.vWr}, s30, v{MG.vL16}
    """)
    for r in range(1, 4):
        k(f"""
        s_xor_b32 s31, s33, {r}
        s_mul_i32 s31, s31, 6144
        s_add_u32 s31, s31, {MRING}
        v_add_u32 v{MG.vRd+r-1}, s31, v{MG.vL16}
        """)
    k("s_mov_b32 s10, 0xffff0000")
    stamp(k, 1)
    k("s_waitcnt lgkmcnt(0)")
    k("s_barrier")
    stamp(k, 2)
    k("s_waitcnt vmcnt(0)")
    for j in range(4):
        k(f"v_lshlrev_b32 v{GW+2*j}, 16, v{GR+j}")
        k(f"v_and_b32 v{GW+2*j+1}, s10, v{GR+j}")
    for t in range(2):
        for j in range(4):
            k(f"v_lshlrev_b32 v{XF+8*t+2*j}, 16, v{XR+4*t+j}")
            k(f"v_and_b32 v{XF+8*t+2*j+1}, s10, v{XR+4*t+j}")
    for t in range(2):
        k(f"v_add_f32 v{RS+t}, v{XF+8*t}, v{XF+8*t+1}")
        k(f"v_mul_f32 v{RS+2+t}, v{XF+8*t}, v{GW}")
    for i in range(1, 8):
        for t in range(2):
            if i >= 2: k(f"v_add_f32 v{RS+t}, v{RS+t}, v{XF+8*t+i}")
            k(f"v_fmac_f32 v{RS+2+t}, v{XF+8*t+i}, v{GW+i}")
    k("s_barrier")
    def wave_reduce(regs):
        pad = max(0, 3 - len(regs))
        steps = [f"{c} row_mask:0xf bank_mask:0xf bound_ctrl:0" for c in ("row_shr:1", "row_shr:2", "row_shr:4", "row_shr:8")]
        steps += ["row_bcast:15 row_mask:0xa bank_mask:0xf", "row_bcast:31 row_mask:0xc bank_mask:0xf"]
        for c in steps:
            for r in regs: k(f"v_add_f32_dpp v{r}, v{r}, v{r} {c}")
            if pad: k(f"s_nop {pad-1}")
    k("s_nop 1")
    wave_reduce([RS, RS+1, RS+2, RS+3])
    k(f"s_mov_b32 s10, {f32(1.0/512)}")
    k(f"s_mov_b32 s11, {f32(-LOG2E)}")
    for t in range(2): k(f"v_mul_f32 v{RS+t}, s10, v{RS+t}")
    for t in range(2): k(f"v_mul_f32 v{RS+2+t}, s11, v{RS+2+t}")
    for t in range(2): k(f"v_readlane_b32 s{4+t}, v{RS+t}, 63")
    for t in range(2): k(f"v_exp_f32 v{RS+2+t}, v{RS+2+t}")
    for t in range(2):
        for i in range(8): k(f"v_subrev_f32 v{XF+8*t+i}, s{4+t}, v{XF+8*t+i}")
    for t in range(2): k(f"v_add_f32 v{RS+2+t}, 1.0, v{RS+2+t}")
    for t in range(2): k(f"v_rcp_f32 v{RS+2+t}, v{RS+2+t}")
    for t in range(2): k(f"v_mul_f32 v{RS+t}, v{XF+8*t}, v{XF+8*t}")
    for i in range(1, 8):
        for t in range(2): k(f"v_fmac_f32 v{RS+t}, v{XF+8*t+i}, v{XF+8*t+i}")
    k("s_barrier")
    k("buffer_load_dword v136, v15, s[60:63], 0 offen sc1")
    k("s_nop 1")
    wave_reduce([RS, RS+1])
    k(f"v_mov_b32 v{PK}, {f32(1e-5)}")
    for t in range(2): k(f"v_fma_f32 v{RS+t}, v{RS+t}, s10, v{PK}")
    for t in range(2): k(f"v_rsq_f32 v{RS+t}, v{RS+t}")
    k("s_nop 0")
    for t in range(2): k(f"v_readlane_b32 s{4+t}, v{RS+t}, 63")
    k(f"""
    s_lshl_b32 s31, s29, 2
    s_add_u32 s31, s31, {GF}
    s_mov_b32 exec_lo, 0
    s_mov_b32 exec_hi, 0x80000000
    buffer_store_dwordx2 {vr(RS+2,2)}, v15, s[20:23], s31 offen sc1
    s_mov_b64 exec, -1
    s_lshl_b32 s31, s33, 11
    s_add_u32 s31, s31, {MRING}
    v_lshlrev_b32 v{MG.T}, 5, v2
    v_add_u32 v{MG.T}, s31, v{MG.T}
    """)
    for t in range(2):
        for i in range(8): k(f"v_mul_f32 v{XF+8*t+i}, s{4+t}, v{XF+8*t+i}")
    for i in range(8): k(f"v_cvt_pk_bf16_f32 v{PK+i}, v{XF+i}, v{XF+8+i}")
    k(f"""
    ds_write_b128 v{MG.T}, {vr(PK,4)}
    ds_write_b128 v{MG.T}, {vr(PK+4,4)} offset:16
    s_lshl_b32 s31, s33, 9
    s_add_u32 s31, s31, {MRING}
    v_lshlrev_b32 v{MG.T+1}, 2, v2
    v_add_u32 v{MG.T+1}, s31, v{MG.T+1}
    s_waitcnt lgkmcnt(0)
    s_barrier
    ds_read2st64_b32 {vr(XR,2)}, v{MG.T+1} offset0:0 offset1:8
    ds_read2st64_b32 {vr(XR+2,2)}, v{MG.T+1} offset0:16 offset1:24
    ds_read2st64_b32 {vr(XR+4,2)}, v{MG.T+1} offset0:1 offset1:9
    ds_read2st64_b32 {vr(XR+6,2)}, v{MG.T+1} offset0:17 offset1:25
    v_lshrrev_b32 v{MG.T}, 5, v2
    v_lshlrev_b32 v{MG.T}, 10, v{MG.T}
    v_and_b32 v{MG.T+2}, 31, v2
    v_lshl_add_u32 v{MG.T}, v{MG.T+2}, 4, v{MG.T}
    s_lshr_b32 s31, s28, 4
    s_lshl_b32 s31, s31, 11
    s_bfe_u32 s4, s28, 0x10003
    s_lshl_b32 s4, s4, 9
    s_add_u32 s31, s31, s4
    s_lshl_b32 s4, s33, 19
    s_add_u32 s31, s31, s4
    s_add_u32 s31, s31, {HF}
    s_add_u32 s4, s31, 262144
    s_waitcnt lgkmcnt(0)
    buffer_store_dwordx4 {vr(XR,4)}, v{MG.T}, s[20:23], s31 offen sc1
    buffer_store_dwordx4 {vr(XR+4,4)}, v{MG.T}, s[20:23], s4 offen sc1
    s_barrier
    s_barrier
    s_barrier
    s_cmp_lg_u32 s33, 1
    s_cbranch_scc1 L_m_i3
    s_mov_b32 s5, 0
    s_waitcnt vmcnt(3)
L_m_tag:
    v_readfirstlane_b32 s4, v136
    s_cmp_lg_u32 s4, 0
    s_cbranch_scc1 L_m_tagok
    buffer_load_dword v136, v15, s[60:63], 0 offen sc1
    s_add_u32 s5, s5, 1
    s_cmp_lt_u32 s5, {SPIN}
    s_waitcnt vmcnt(0)
    s_cbranch_scc1 L_m_tag
L_m_tagok:
    ds_write_b32 v{MG.vZ}, v136 offset:{C_NONCE}
    s_waitcnt lgkmcnt(0)
L_m_i3:
    s_barrier
    s_waitcnt vmcnt(0)
    s_barrier
    """)
    get_nonce(k, MG.vZ, MG.T)
    stamp(k, 3)
    k(f"""
    s_setprio 3
    s_cmp_lg_u32 s33, 1
    s_cbranch_scc1 L_m_i4
    s_lshl_b32 s31, s28, 4
    s_add_u32 s31, s31, {FH}
    """)
    flag_store(k, 31, MG.T, MG.T+1)
    k(f"""
L_m_i4:
    s_lshr_b32 s8, s33, 1          ; a
    s_and_b32 s9, s33, 1           ; b
    """)
    srd(k, 12, P_W1, 2048*1376*2)
    srd(k, 16, P_B1, 1376*2)
    srd(k, 60, P_W2, 1376*2048*2)
    k(f"""
    s_lshl_b32 s31, s33, 13
    s_add_u32 s31, s31, {FH}
    v_lshlrev_b32 v15, 7, v2
    """)
    if "H" in OPT: lds_wait(k, MG.vZ, C_ALL, MG.T, 28, sleep=2)
    else: lds_wait(k, MG.vZ, C_PUB, MG.T, 4, sleep=1)
    flag_poll(k, 15, 31, MG.T)
    stamp(k, 4)
    if "t" not in OPT:
        k(f"""
        s_and_b32 s4, s24, 1
        s_lshl_b32 s4, s4, 2
        s_and_b32 s5, s25, 3
        s_add_u32 s4, s4, s5
        s_lshl_b32 s4, s4, 18
        s_lshl_b32 s5, s33, 16
        s_add_u32 s4, s4, s5
        s_lshr_b32 s5, s25, 2
        s_lshl_b32 s5, s5, 13
        s_add_u32 s4, s4, s5
        s_add_u32 s4, s4, {HF}
        v_lshlrev_b32 v{MG.T+1}, 7, v2
        buffer_load_dword v{MG.T+3}, v{MG.T+1}, s[20:23], s4 offen sc1
        """)
    k(f"""
    s_cmp_ge_u32 s25, 22
    s_cbranch_scc1 L_m_nog1
    s_lshr_b32 s26, s24, 1
    s_mul_i32 s26, s26, 22
    s_add_u32 s26, s26, s25        ; n
    s_and_b32 s27, s26, 3
    s_and_b32 s4, s24, 1
    s_lshl_b32 s4, s4, 2
    s_add_u32 s27, s27, s4         ; dt
    s_lshr_b32 s26, s26, 2         ; ft
    s_mul_i32 s28, s33, {512*2752}
    s_lshl_b32 s31, s26, 7
    s_add_u32 s28, s28, s31
    s_lshl_b32 s29, s27, 18
    s_lshl_b32 s31, s33, 16
    s_add_u32 s29, s29, s31
    s_add_u32 s29, s29, {HF}
    s_lshl_b32 s10, s8, 6
    s_lshl_b32 s31, s9, 10
    v_xor_b32 v{MG.vL0}, s31, v{MG.vL16}
    v_xor_b32 v{MG.vL1}, 1024, v{MG.vL0}
    """)
    dma_addr(k, MG.vDma, 2752, MG.T, MG.T+1)
    mg_tr_setup(k, False, 10)
    Seg(32, 12, 28, 2752, 29, True, False, fo_flags=" sc1").run(k)
    stamp(k, 5)
    k(f"""
    s_lshl_b32 s10, s8, 6
    s_lshl_b32 s31, s26, 7
    s_add_u32 s10, s10, s31
    v_lshrrev_b32 v15, 5, v2
    v_lshlrev_b32 v15, 3, v15
    """)
    for q in range(4): k(f"buffer_load_dwordx2 {vr(MG.RF+2*q,2)}, v15, s[16:19], s10 offen offset:{q*16}")
    mg_reduce(k)
    B = A + 16; T = A + 32
    k("s_waitcnt vmcnt(0)")
    for q in range(4):
        for j in range(2):
            k(f"v_lshlrev_b32 v{B+4*q+2*j}, 16, v{MG.RF+2*q+j}")
            k(f"v_and_b32 v{B+4*q+2*j+1}, 0xffff0000, v{MG.RF+2*q+j}")
    c0 = math.sqrt(2/math.pi)
    k(f"s_mov_b32 s10, {f32(-2*LOG2E*c0*0.044715)}")
    k(f"v_mov_b32 v15, {f32(-2*LOG2E*c0)}")
    for r in range(16): k(f"v_add_f32 v{A+r}, v{A+r}, v{B+r}")
    for r in range(16): k(f"v_mul_f32 v{T+r}, v{A+r}, v{A+r}")
    for r in range(16): k(f"v_fma_f32 v{T+r}, v{T+r}, s10, v15")
    for r in range(16): k(f"v_mul_f32 v{T+r}, v{T+r}, v{A+r}")
    for r in range(16): k(f"v_exp_f32 v{T+r}, v{T+r}")
    for r in range(16): k(f"v_add_f32 v{T+r}, 1.0, v{T+r}")
    for r in range(16): k(f"v_rcp_f32 v{T+r}, v{T+r}")
    for r in range(16): k(f"v_mul_f32 v{A+r}, v{A+r}, v{T+r}")
    for j in range(8): k(f"v_cvt_pk_bf16_f32 v{B+j}, v{A+2*j}, v{A+2*j+1}")
    k(f"""
    s_mul_i32 s10, s27, {UKS*2048}
    s_lshl_b32 s31, s26, 13
    s_add_u32 s10, s10, s31
    s_lshl_b32 s31, s8, 12
    s_add_u32 s10, s10, s31
    s_lshl_b32 s31, s9, 10
    s_add_u32 s10, s10, s31
    s_add_u32 s10, s10, {UF}
    buffer_store_dwordx4 {vr(B,4)}, v{MG.vL16}, s[20:23], s10 offen sc1
    buffer_store_dwordx4 {vr(B+4,4)}, v{MG.vL16}, s[20:23], s10 offen offset:2048 sc1
    s_lshl_b32 s10, s27, 14
    s_lshl_b32 s31, s26, 9
    s_add_u32 s10, s10, s31
    s_lshl_b32 s31, s33, 7
    s_add_u32 s10, s10, s31
    s_add_u32 s10, s10, {FU}
    """)
    flag_store(k, 10, MG.T+1, MG.T+2)
    mbar(k)
    k("s_branch L_m_g2")
    k("L_m_nog1:")
    if "p" not in OPT:
        srd(k, 12, P_WO, 512*512*2)
        k(f"""
        s_sub_u32 s26, s25, 22
        s_lshl_b32 s26, s26, 2
        s_add_u32 s26, s26, s33        ; p 0..39
        v_lshrrev_b32 v128, 3, v2
        v_and_b32 v129, 7, v2
        v_lshlrev_b32 v130, 12, v128
        v_lshl_add_u32 v130, v129, 7, v130
        s_lshr_b32 s27, s24, 1
        s_lshl_b32 s27, s27, 10
        s_mov_b32 s28, s26
L_m_pf2:
        s_lshl_b32 s10, s28, 15
        s_add_u32 s10, s10, s27
        buffer_load_dword v132, v130, s[60:63], s10 offen
        s_add_u32 s28, s28, 40
        s_cmp_lt_u32 s28, 172
        s_cbranch_scc1 L_m_pf2
        v_lshrrev_b32 v128, 2, v2
        v_and_b32 v129, 3, v2
        v_lshlrev_b32 v130, 10, v128
        v_lshl_add_u32 v130, v129, 7, v130
        s_and_b32 s27, s24, 1
        s_lshl_b32 s27, s27, 9
        s_lshl_b32 s10, s26, 14
        s_add_u32 s10, s10, s27
        buffer_load_dword v132, v130, s[12:15], s10 offen
        """)
    stamp(k, 5)
    k("L_m_g2:")
    final_ids(k)
    srd(k, 16, P_B2, 2048*2)
    k(f"""
    s_mul_i32 s28, s33, {22*16*4096}
    s_lshl_b32 s31, s26, 7
    s_add_u32 s28, s28, s31
    s_mul_i32 s29, s27, {UKS*2048}
    s_mul_i32 s31, s33, {22*2048}
    s_add_u32 s29, s29, s31
    s_add_u32 s29, s29, {UF}
    s_lshl_b32 s10, s9, 6
    s_lshl_b32 s31, s8, 10
    v_xor_b32 v{MG.vL0}, s31, v{MG.vL16}
    v_xor_b32 v{MG.vL1}, 1024, v{MG.vL0}
    """)
    dma_addr(k, MG.vDma, 4096, MG.T, MG.T+1)
    mg_tr_setup(k, True, 10)
    stamp(k, 6)
    k(f"""
    v_min_u32 v15, 21, v2
    v_lshlrev_b32 v15, 7, v15
    s_lshl_b32 s10, s27, 14
    s_mul_i32 s31, s33, {22*128}
    s_add_u32 s10, s10, s31
    s_add_u32 s10, s10, {FU}
    """)
    flag_poll(k, 15, 10, MG.T, sleep=8)
    stamp(k, 7)
    if "t" not in OPT:
        k(f"""
        s_and_b32 s31, s26, 7
        s_mul_i32 s31, s31, {44*128}
        s_add_u32 s31, s31, s29
        v_min_u32 v{MG.T+1}, 43, v2
        v_lshlrev_b32 v{MG.T+1}, 7, v{MG.T+1}
        buffer_load_dword v{MG.T+3}, v{MG.T+1}, s[20:23], s31 offen sc1
        """)
    Seg(22, 60, 28, 4096, 29, False, True, fo_flags=" sc1").run(k)
    stamp(k, 8)
    k(f"""
    v_and_b32 v15, 31, v2
    s_lshl_b32 s10, s26, 6
    s_lshl_b32 s31, s9, 5
    s_add_u32 s10, s10, s31
    v_add_u32 v15, s10, v15
    v_lshlrev_b32 v{MG.T+1}, 2, v15
    v_lshlrev_b32 v15, 1, v15
    s_mov_b32 s10, {GF}
    buffer_load_dword v{MG.RF}, v{MG.T+1}, s[20:23], s10 offen sc1
    buffer_load_ushort v{MG.RF+1}, v15, s[16:19], 0 offen
    """)
    mg_reduce(k)
    G = MG.RF; BA = A + 16; FOb = A + 32; FWb = A + 48
    srd(k, 12, P_OUT, 2048*512*2)
    k(f"""
    s_waitcnt vmcnt(0)
    v_sub_f32 v{G+2}, 1.0, v{G}
    v_lshlrev_b32 v{G+1}, 16, v{G+1}
    """)
    for r in range(16): k(f"v_add_f32 v{A+r}, v{A+r}, v{G+1}")
    for r in range(16): k(f"v_mul_f32 v{A+r}, v{A+r}, v{G+2}")
    for r in range(16): k(f"v_mov_b32 v{BA+r}, 0")
    tr_addr(k, 5, True, MG.T, MG.T+1)
    k(f"""
    s_lshl_b32 s31, s8, 6
    v_xor_b32 v5, s31, v5
    v_add_u32 v5, 16384, v5
    s_lshl_b32 s31, s9, 10
    v_add_u32 v4, s31, v{MG.vL16}
    v_and_b32 v10, 31, v2
    v_lshlrev_b32 v10, 10, v10
    v_lshrrev_b32 v11, 5, v2
    v_lshl_add_u32 v10, v11, 4, v10
    s_lshl_b32 s28, s26, 16
    s_lshl_b32 s31, s9, 15
    s_add_u32 s28, s28, s31
    s_lshl_b32 s31, s27, 7
    s_add_u32 s28, s28, s31
    s_lshl_b32 s31, s8, 6
    s_add_u32 s28, s28, s31
    s_mov_b32 s29, 0
    v_add_u32 v6, {C_ST}, v{MG.vZ}
    s_setprio 0
    """)
    stamp(k, 9)
    lds_wait(k, MG.vZ, C_GO2, MG.T, 1, sleep=2)
    k("s_setprio 3")
    stamp(k, 10)
    k("L_f_loop:")
    lds_wait(k, 6, 0, MG.T, 4, sleep=0)
    def rd(ks):
        b = ks & 3
        return [f"ds_read_b128 {vr(FOb+4*b,4)}, v4 offset:{ks*2048}",
                f"ds_read_b64_tr_b16 {vr(FWb+4*b,2)}, v5 offset:{ks*2048}",
                f"ds_read_b64_tr_b16 {vr(FWb+4*b+2,2)}, v5 offset:{ks*2048+1024}"]
    for ks in range(4): k.emit(rd(ks))
    for ks in range(8):
        b = ks & 3
        rem = min(ks+4, 8) - (ks+1)
        k(f"s_waitcnt lgkmcnt({rem*3})")
        k(f"v_mfma_f32_32x32x16_bf16 {vr(BA,16)}, {vr(FWb+4*b,4)}, {vr(FOb+4*b,4)}, {vr(BA,16)}")
        if ks + 4 < 8: k.emit(rd(ks+4))
    k(f"""
    v_add_u32 v4, 32768, v4
    v_add_u32 v5, 32768, v5
    v_add_u32 v6, 4, v6
    s_add_u32 s29, s29, 1
    s_cmp_lt_u32 s29, 4
    s_cbranch_scc1 L_f_loop
    s_nop 12
    """)
    stamp(k, 11)
    for r in range(16): k(f"v_fmac_f32 v{A+r}, v{BA+r}, v{G}")
    Bq = FOb
    for j in range(8): k(f"v_cvt_pk_bf16_f32 v{Bq+j}, v{A+2*j}, v{A+2*j+1}")
    k(f"""
    s_nop 1
    v_permlane32_swap_b32 v{Bq}, v{Bq+2}
    v_permlane32_swap_b32 v{Bq+1}, v{Bq+3}
    v_permlane32_swap_b32 v{Bq+4}, v{Bq+6}
    v_permlane32_swap_b32 v{Bq+5}, v{Bq+7}
    s_nop 1
    buffer_store_dwordx4 {vr(Bq,4)}, v10, s[12:15], s28 offen
    buffer_store_dwordx4 {vr(Bq+4,4)}, v10, s[12:15], s28 offen offset:32
    """)
    stamp_flush(k, 12)
    k(f"{end}:")
    k("s_endpgm")
    return k

if __name__ == "__main__":
    kk = fused()
    out = sys.argv[1] if len(sys.argv) > 1 else "gated_mix__softmax_full_mha__mixer_token_mlp__prompt.s"
    open(out, "w").write(build([kk]))
```

```python
import sys, math, struct, os
from asmlib import *

NAME = "gated_mix__softmax_full_mha__mixer_token_mlp__prompt_kernel"
QF = 0x000000
KV = 0x200000
HF = 0x600000
UF = 0x800000
GF = 0x980000
F1 = 0xC00000
FH = 0xD00000
FU = 0xC30000
FO_ = 0xC80000
OF = 0xA00000
PF = 0x1000000
FP = 0xCC0000
TS = 0xE00000
WS_BYTES = 0x10000000
UKS = 88
def f32(x): return f"{struct.unpack('<I', struct.pack('<f', x))[0]:#010x}"
LOG2E = 1.4426950408889634
STAMP = bool(os.environ.get("STAMP"))
OPT = os.environ.get("OPT", "")
SPIN = 0x40000
P_X, P_WQKV, P_WO, P_W1, P_B1, P_W2, P_B2, P_GW, P_OUT, P_DBG, P_WS = 36, 38, 40, 44, 46, 48, 50, 52, 54, 56, 58
NONCE = 35
KVP = 2064
MRING = 64*KVP
RB = 16896
QST = RB + 131072
CNT = MRING + 4*6144
C_ALL, C_M, C_GO, C_NONCE, C_DONE, C_GO2, C_PUB, C_ST = 64, 68, 72, 76, 80, 84, 88, 96
C_PROG, C_FREE, C_H, C_C0, C_QRD, C_STD = 112, 128, 144, 148, 152, 156

def stamp(k, i):
    if not STAMP: return
    k(f"""
    s_memrealtime s[92:93]
    s_memtime s[94:95]
    s_waitcnt lgkmcnt(0)
    s_mov_b32 s{64+2*i}, s92
    s_mov_b32 s{65+2*i}, s94
    """)
def stamp_flush(k, n):
    if not STAMP: return
    k("s_waitcnt vmcnt(0)")
    stamp(k, n)
    k(f"""
    s_lshl_b32 s92, s2, 11
    s_lshl_b32 s93, s3, 7
    s_add_u32 s92, s92, s93
    s_add_u32 s92, s92, {TS}
    s_mov_b64 exec, 1
    v_mov_b32 v1, 0
    """)
    for i in range(2*n+2):
        k(f"v_mov_b32 v0, s{64+i}")
        k(f"buffer_store_dword v0, v1, s[20:23], s92 offen offset:{4*i}")

def lds_wait(k, vaddr, off, vt, target, sleep=1, st=4):
    l = k.lab("lw"); d = k.lab("lwd")
    k(f"""
{l}:
    ds_read_b32 v{vt}, v{vaddr} offset:{off}
    s_waitcnt lgkmcnt(0)
    v_readfirstlane_b32 s{st}, v{vt}
    s_cmp_ge_u32 s{st}, {target}
    s_cbranch_scc1 {d}
    s_sleep {sleep}
    s_branch {l}
{d}:
    """)
def lds_add(k, vaddr, vone, offs):
    k("s_mov_b64 exec, 1")
    for o in offs: k(f"ds_add_u32 v{vaddr}, v{vone} offset:{o}")
    k("s_mov_b64 exec, -1")
def flag_poll(k, voff, soff, vt, sleep=2, sc=5):
    l = k.lab("fp"); d = k.lab("fpd")
    k(f"""
    s_mov_b32 s{sc}, 0
{l}:
    buffer_load_dword v{vt}, v{voff}, s[20:23], s{soff} offen sc1
    s_add_u32 s{sc}, s{sc}, 1
    s_waitcnt vmcnt(0)
    v_cmp_ne_u32 vcc, s{NONCE}, v{vt}
    s_and_b64 exec, exec, vcc
    s_cbranch_scc0 {d}
    s_sleep {sleep}
    s_cmp_lt_u32 s{sc}, {SPIN}
    s_cbranch_scc1 {l}
{d}:
    s_mov_b64 exec, -1
    """)
def flag_store(k, soff, va, vb):
    k(f"""
    v_mov_b32 v{va}, 0
    v_mov_b32 v{vb}, s{NONCE}
    s_waitcnt vmcnt(0)
    s_mov_b64 exec, 1
    buffer_store_dword v{vb}, v{va}, s[20:23], s{soff} offen sc1
    s_mov_b64 exec, -1
    """)
def get_nonce(k, vz, vt):
    k(f"""
    ds_read_b32 v{vt}, v{vz} offset:{C_NONCE}
    s_waitcnt lgkmcnt(0)
    v_readfirstlane_b32 s{NONCE}, v{vt}
    """)

class MG:
    ACC = 16; FO = 80; RF = 112
    vL0 = 3; vL1 = 4; vDma = 5; vTr = 6
    vZ = 8; vOne = 9; vRd = 10; vWr = 13; vL16 = 14
    T = 128
def tr_addr(k, dst, sigma, a, c):
    k(f"""
    v_bfe_u32 v{a}, v2, 2, 2
    v_lshrrev_b32 v{dst}, 5, v2
    v_lshl_add_u32 v{dst}, v{dst}, {2 if sigma else 3}, v{a}
    v_lshlrev_b32 v{dst}, 7, v{dst}
    v_bfe_u32 v{c}, v2, 4, 1
    v_lshl_add_u32 v{dst}, v{c}, 5, v{dst}
    v_and_b32 v{c}, 3, v2
    v_lshl_add_u32 v{dst}, v{c}, 3, v{dst}
    v_lshrrev_b32 v{c}, 1, v{a}
    v_lshl_add_u32 v{dst}, v{c}, 6, v{dst}
    """)
def mg_tr_setup(k, sigma, gx):
    a, b, c = MG.T, MG.T+1, MG.T+2
    tr_addr(k, b, sigma, a, c)
    k(f"""
    v_xor_b32 v{b}, s{gx}, v{b}
    v_add_u32 v{MG.vTr}, s30, v{b}
    v_xor_b32 v{b}, 64, v{b}
    v_add_u32 v{MG.vTr+1}, s30, v{b}
    """)
def dma_addr(k, vdst, pitch, a, b):
    k(f"""
    v_lshrrev_b32 v{a}, 3, v2
    v_mul_u32_u24 v{vdst}, {pitch}, v{a}
    v_bfe_u32 v{a}, v2, 4, 1
    v_lshlrev_b32 v{a}, 2, v{a}
    v_and_b32 v{b}, 7, v2
    v_xor_b32 v{a}, v{a}, v{b}
    v_lshl_add_u32 v{vdst}, v{a}, 4, v{vdst}
    """)
class Seg:
    def __init__(self, nsteps, ring_srd, s_ring, pitch, s_fo, ring_is_A, sigma, fo_flags=""):
        self.__dict__.update(locals())
    def ring(self, j):
        sl = j % 3
        return ([f"s_add_u32 m0, s30, {sl*2048}",
                 f"s_add_u32 s31, s{self.s_ring}, {8*self.pitch}",
                 f"buffer_load_dwordx4 v{MG.vDma}, s[{self.ring_srd}:{self.ring_srd+3}], s{self.s_ring} offen lds"],
                [f"s_add_u32 m0, s30, {sl*2048+1024}",
                 f"s_add_u32 s{self.s_ring}, s{self.s_ring}, {16*self.pitch}",
                 f"buffer_load_dwordx4 v{MG.vDma}, s[{self.ring_srd}:{self.ring_srd+3}], s31 offen lds"])
    def fo(self, j):
        sl = j % 4
        return [f"buffer_load_dwordx4 {vr(MG.FO+sl*8,4)}, v{MG.vL0}, s[20:23], s{self.s_fo} offen{self.fo_flags}",
                f"buffer_load_dwordx4 {vr(MG.FO+sl*8+4,4)}, v{MG.vL1}, s[20:23], s{self.s_fo} offen{self.fo_flags}",
                f"s_add_u32 s{self.s_fo}, s{self.s_fo}, 2048"]
    def group(self, j):
        r = self.ring(j); return r[0] + r[1] + self.fo(j)
    def trs(self, j):
        sl = j % 3; buf = j & 1
        ustep = 1024 if self.sigma else 512
        return [f"ds_read_b64_tr_b16 {vr(MG.RF+buf*8+g*4+u*2,2)}, v{MG.vTr+g} offset:{sl*2048+u*ustep}" for g in range(2) for u in range(2)]
    def mfmas(self, j):
        sl = j % 4; buf = j & 1
        out = []
        for mi in range(2):
            for ni in range(2):
                a = MG.ACC + (mi*2+ni)*16
                if self.ring_is_A: A = vr(MG.RF+buf*8+mi*4, 4); B = vr(MG.FO+sl*8+ni*4, 4)
                else:              A = vr(MG.FO+sl*8+mi*4, 4); B = vr(MG.RF+buf*8+ni*4, 4)
                out.append(f"v_mfma_f32_32x32x16_bf16 {vr(a,16)}, {A}, {B}, {'0' if j == 0 else vr(a,16)}")
        return out
    def run(self, k):
        n = self.nsteps
        for j in range(3): k.emit(self.group(j))
        k("s_waitcnt vmcnt(10)")
        k.emit(self.trs(0))
        k("s_waitcnt lgkmcnt(0)")
        k.emit(self.group(3))
        for i in range(n):
            last = min(i+3, n-1)
            m = self.mfmas(i)
            if i + 1 < n:
                k(f"s_waitcnt vmcnt({2 + 4*(last-(i+1))})")
                k.emit(self.trs(i+1))
            else:
                k("s_waitcnt vmcnt(0)")
            more = i + 4 < n
            SL = os.environ.get("SL")
            sp = (lambda: k(f"s_sleep {SL}")) if SL else (lambda: None)
            k(m[0])
            if i + 1 < n: k("s_waitcnt lgkmcnt(0)")
            sp()
            k(m[1])
            if more: k.emit(self.ring(i+4)[0])
            sp()
            k(m[2])
            if more: k.emit(self.ring(i+4)[1])
            sp()
            k(m[3])
            if more: k.emit(self.fo(i+4))
            sp()
def mbar(k):
    k("s_waitcnt lgkmcnt(0)")
    lds_add(k, MG.vZ, MG.vOne, [C_M])
    k("s_add_u32 s34, s34, 4")
    l = k.lab("mbar")
    k(f"""
{l}:
    ds_read_b32 v{MG.T}, v{MG.vZ} offset:{C_M}
    s_waitcnt lgkmcnt(0)
    v_readfirstlane_b32 s4, v{MG.T}
    s_cmp_lt_u32 s4, s34
    s_cbranch_scc1 {l}
    """)
def mg_reduce(k):
    A = MG.ACC; T = MG.FO
    k("s_nop 15")
    for h in range(2):
        for r in range(1, 4):
            for q in range(2):
                k(f"ds_write_b128 v{MG.vWr}, {vr(A+r*16+(2*h+q)*4,4)} offset:{(r-1)*2048+q*1024}")
        mbar(k)
        for r in range(1, 4):
            for q in range(2):
                k(f"ds_read_b128 {vr(T+((r-1)*2+q)*4,4)}, v{MG.vRd+r-1} offset:{(r-1)*2048+q*1024}")
        if h == 0: mbar(k)
        else: k("s_waitcnt lgkmcnt(0)")
        for j in range(8):
            k(f"v_add_f32 v{T+j}, v{T+j}, v{T+8+j}")
            k(f"v_add_f32 v{A+8*h+j}, v{A+8*h+j}, v{T+16+j}")
        for j in range(8):
            k(f"v_add_f32 v{A+8*h+j}, v{A+8*h+j}, v{T+j}")


def lds_wait_min4(k, vaddr, off, vt, target, sleep=0, st=4):
    l = k.lab("lm"); d = k.lab("lmd")
    k(f"""
{l}:
    ds_read_b128 {vr(vt,4)}, v{vaddr} offset:{off}
    s_waitcnt lgkmcnt(0)
    v_min3_u32 v{vt}, v{vt}, v{vt+1}, v{vt+2}
    v_min_u32 v{vt}, v{vt}, v{vt+3}
    s_nop 0
    v_readfirstlane_b32 s{st}, v{vt}
    s_cmp_ge_u32 s{st}, {target}
    s_cbranch_scc1 {d}
    s_sleep {sleep}
    s_branch {l}
{d}:
    """)
RM = int(os.environ.get("RM", "8"))
def fused():
    k = Kern(NAME, 256, 768, 163840, nvgpr=168, nsgpr=96)
    end = "L_end"
    k(f"""
    s_cmp_ge_u32 s2, 256
    s_cbranch_scc1 {end}
    s_load_dwordx16 s[36:51], s[0:1], 0
    s_load_dwordx8 s[52:59], s[0:1], 64
    v_lshrrev_b32 v1, 6, v0
    v_and_b32 v2, 63, v0
    v_readfirstlane_b32 s3, v1
    s_and_b32 s24, s2, 7
    s_lshr_b32 s25, s2, 3          ; i
    s_cmp_lg_u32 s3, 3
    s_cbranch_scc1 L_nopf
    s_getpc_b64 s[4:5]
L_pc:
    v_lshlrev_b32 v136, 7, v2
    global_load_dword v1, v136, s[4:5]
    v_add_u32 v136, 8192, v136
    v_min_u32 v136, {end}-L_pc-4, v136
    global_load_dword v1, v136, s[4:5]
    v_add_u32 v136, 8192, v136
    v_min_u32 v136, {end}-L_pc-4, v136
    global_load_dword v1, v136, s[4:5]
L_nopf:
    """)
    stamp(k, 0)
    def g1_ids(k, sfb, sdq, skq):
        k(f"""
        s_and_b32 s{sfb}, s24, 1
        s_mul_i32 s{sfb}, s{sfb}, 30
        s_add_u32 s{sfb}, s{sfb}, s25
        s_and_b32 s{sdq}, s{sfb}, 3
        s_lshr_b32 s{sfb}, s{sfb}, 2
        s_lshr_b32 s{skq}, s24, 1
        """)
    k(f"""
    s_lshr_b32 s26, s24, 1
    s_lshl_b32 s26, s26, 3
    s_and_b32 s6, s25, 7
    s_add_u32 s26, s26, s6         ; tb 0..31
    s_and_b32 s27, s24, 1
    s_lshl_b32 s27, s27, 2
    s_lshr_b32 s7, s25, 3
    s_add_u32 s27, s27, s7         ; hq 0..7
    s_cmp_lt_u32 s3, 4
    s_cbranch_scc1 L_comp
    s_cmp_lt_u32 s3, 8
    s_cbranch_scc1 L_loader
    """)
    A = MG.ACC
    XR = 16; GR = 24; XF = 32; GW = 48; RS = 56; PK = 64
    k(f"""
L_m_start:
    {"s_endpgm" if "Q" in OPT else ""}
    s_sub_u32 s33, s3, 8           ; mw
    s_lshl_b32 s28, s26, 6
    s_lshl_b32 s29, s27, 3
    s_add_u32 s28, s28, s29
    s_lshl_b32 s29, s33, 1
    s_add_u32 s29, s29, s28
    s_lshl_b32 s31, s29, 10
    v_lshlrev_b32 v{MG.vL16}, 4, v2
    v_mov_b32 v{MG.vZ}, {CNT}
    v_mov_b32 v{MG.vOne}, 1
    v_mov_b32 v15, 0
    s_waitcnt lgkmcnt(0)
    """)
    srd(k, 12, P_X, 2048*512*2)
    srd(k, 16, P_GW, 1024)
    k(f"""
    buffer_load_dwordx4 {vr(XR,4)}, v{MG.vL16}, s[12:15], s31 offen
    buffer_load_dwordx4 {vr(XR+4,4)}, v{MG.vL16}, s[12:15], s31 offen offset:1024
    buffer_load_dwordx4 {vr(GR,4)}, v{MG.vL16}, s[16:19], 0 offen
    """)
    srd(k, 20, P_WS, WS_BYTES)
    srd(k, 60, P_DBG, 256)
    srd(k, 12, P_W1, 2048*1376*2)
    k(f"""
    s_cmp_lg_u32 s33, 1
    s_cbranch_scc1 L_m_i1
    s_cmp_lg_u32 s2, 0
    s_cbranch_scc1 L_m_i1
    s_memrealtime s[4:5]
    s_waitcnt lgkmcnt(0)
    s_or_b32 s4, s4, 1
    v_mov_b32 v138, s4
    s_mov_b64 exec, 1
    buffer_store_dword v138, v15, s[60:63], 0 offen sc1
    s_mov_b64 exec, -1
L_m_i1:
    s_cmp_lg_u32 s33, 0
    s_cbranch_scc1 L_m_i2
    v_lshlrev_b32 v136, 2, v2
    v_add_u32 v136, {CNT}, v136
    v_cmp_eq_u32 vcc, 8, v2
    v_mov_b32 v138, 4
    s_nop 0
    v_cndmask_b32 v138, 0, v138, vcc
    ds_write_b32 v136, v138
    v_and_b32 v136, 7, v2
    v_mul_u32_u24 v136, {KVP}, v136
    v_mov_b32 v140, 0x3f803f80
    v_mov_b32 v141, 0x3f803f80
    v_mov_b32 v142, 0x3f803f80
    v_mov_b32 v143, 0x3f803f80
    ds_write_b128 v136, v[140:143] offset:2048
L_m_i2:
    s_mov_b32 s10, 0xffff0000
    s_mov_b32 s34, 0
    s_waitcnt lgkmcnt(0)
    s_barrier
    s_cmp_eq_u32 s2, 0
    s_cbranch_scc1 L_m_i2b
    s_waitcnt vmcnt(0)
L_m_i2b:
    s_cmp_eq_u32 s33, 1
    s_cbranch_scc1 L_m_i2c
    s_waitcnt vmcnt(0)
L_m_i2c:
    s_waitcnt vmcnt(1)
    """)
    for j in range(4):
        k(f"v_lshlrev_b32 v{GW+2*j}, 16, v{GR+j}")
        k(f"v_and_b32 v{GW+2*j+1}, s10, v{GR+j}")
    for t in range(2):
        for j in range(4):
            k(f"v_lshlrev_b32 v{XF+8*t+2*j}, 16, v{XR+4*t+j}")
            k(f"v_and_b32 v{XF+8*t+2*j+1}, s10, v{XR+4*t+j}")
    for t in range(2):
        k(f"v_add_f32 v{RS+t}, v{XF+8*t}, v{XF+8*t+1}")
        k(f"v_mul_f32 v{RS+2+t}, v{XF+8*t}, v{GW}")
    for i in range(1, 8):
        for t in range(2):
            if i >= 2: k(f"v_add_f32 v{RS+t}, v{RS+t}, v{XF+8*t+i}")
            k(f"v_fmac_f32 v{RS+2+t}, v{XF+8*t+i}, v{GW+i}")
    def wave_reduce(regs):
        pad = max(0, 3 - len(regs))
        steps = [f"{c} row_mask:0xf bank_mask:0xf bound_ctrl:0" for c in ("row_shr:1", "row_shr:2", "row_shr:4", "row_shr:8")]
        steps += ["row_bcast:15 row_mask:0xa bank_mask:0xf", "row_bcast:31 row_mask:0xc bank_mask:0xf"]
        for c in steps:
            for r in regs: k(f"v_add_f32_dpp v{r}, v{r}, v{r} {c}")
            if pad: k(f"s_nop {pad-1}")
    k("buffer_load_dword v136, v15, s[60:63], 0 offen sc1")
    k("s_nop 1")
    wave_reduce([RS, RS+1, RS+2, RS+3])
    k(f"s_mov_b32 s10, {f32(1.0/512)}")
    k(f"s_mov_b32 s11, {f32(-LOG2E)}")
    for t in range(2): k(f"v_mul_f32 v{RS+t}, s10, v{RS+t}")
    for t in range(2): k(f"v_mul_f32 v{RS+2+t}, s11, v{RS+2+t}")
    for t in range(2): k(f"v_readlane_b32 s{4+t}, v{RS+t}, 63")
    for t in range(2): k(f"v_exp_f32 v{RS+2+t}, v{RS+2+t}")
    for t in range(2):
        for i in range(8): k(f"v_subrev_f32 v{XF+8*t+i}, s{4+t}, v{XF+8*t+i}")
    for t in range(2): k(f"v_add_f32 v{RS+2+t}, 1.0, v{RS+2+t}")
    for t in range(2): k(f"v_rcp_f32 v{RS+2+t}, v{RS+2+t}")
    for t in range(2): k(f"v_mul_f32 v{RS+t}, v{XF+8*t}, v{XF+8*t}")
    for i in range(1, 8):
        for t in range(2): k(f"v_fmac_f32 v{RS+t}, v{XF+8*t+i}, v{XF+8*t+i}")
    k("s_nop 1")
    wave_reduce([RS, RS+1])
    k(f"v_mov_b32 v{PK}, {f32(1e-5)}")
    for t in range(2): k(f"v_fma_f32 v{RS+t}, v{RS+t}, s10, v{PK}")
    for t in range(2): k(f"v_rsq_f32 v{RS+t}, v{RS+t}")
    k("s_nop 0")
    for t in range(2): k(f"v_readlane_b32 s{4+t}, v{RS+t}, 63")
    k(f"""
    s_lshl_b32 s31, s29, 2
    s_add_u32 s31, s31, {GF}
    s_mov_b32 exec_lo, 0
    s_mov_b32 exec_hi, 0x80000000
    buffer_store_dwordx2 {vr(RS+2,2)}, v15, s[20:23], s31 offen sc1
    s_mov_b64 exec, -1
    s_lshl_b32 s31, s33, 11
    s_add_u32 s31, s31, {QST}
    v_lshlrev_b32 v{MG.T}, 5, v2
    v_add_u32 v{MG.T}, s31, v{MG.T}
    """)
    for t in range(2):
        for i in range(8): k(f"v_mul_f32 v{XF+8*t+i}, s{4+t}, v{XF+8*t+i}")
    for i in range(8): k(f"v_cvt_pk_bf16_f32 v{PK+i}, v{XF+i}, v{XF+8+i}")
    k(f"""
    ds_write_b128 v{MG.T}, {vr(PK,4)}
    ds_write_b128 v{MG.T}, {vr(PK+4,4)} offset:16
    s_lshl_b32 s31, s33, 9
    s_add_u32 s31, s31, {QST}
    v_lshlrev_b32 v{MG.T+1}, 2, v2
    v_add_u32 v{MG.T+1}, s31, v{MG.T+1}
    v_lshrrev_b32 v{MG.T}, 5, v2
    v_lshlrev_b32 v{MG.T}, 10, v{MG.T}
    v_and_b32 v{MG.T+2}, 31, v2
    v_lshl_add_u32 v{MG.T}, v{MG.T+2}, 4, v{MG.T}
    s_lshr_b32 s31, s28, 4
    s_lshl_b32 s31, s31, 11
    s_bfe_u32 s4, s28, 0x10003
    s_lshl_b32 s4, s4, 9
    s_add_u32 s31, s31, s4
    s_lshl_b32 s4, s33, 19
    s_add_u32 s31, s31, s4
    s_add_u32 s31, s31, {HF}
    s_add_u32 s6, s31, 262144
    """)
    TA, TB = MG.T+4, MG.T+5
    k(f"v_mov_b32 v{TA}, v{MG.T}")
    stamp(k, 1)
    mbar(k)
    k(f"""
    ds_read2st64_b32 {vr(XR,2)}, v{MG.T+1} offset0:0 offset1:8
    ds_read2st64_b32 {vr(XR+2,2)}, v{MG.T+1} offset0:16 offset1:24
    ds_read2st64_b32 {vr(XR+4,2)}, v{MG.T+1} offset0:1 offset1:9
    ds_read2st64_b32 {vr(XR+6,2)}, v{MG.T+1} offset0:17 offset1:25
    s_waitcnt lgkmcnt(0)
    buffer_store_dwordx4 {vr(XR,4)}, v{TA}, s[20:23], s31 offen sc1
    buffer_store_dwordx4 {vr(XR+4,4)}, v{TA}, s[20:23], s6 offen sc1
    s_mov_b32 s5, 0
    s_waitcnt vmcnt(3)
L_m_tag:
    v_readfirstlane_b32 s{NONCE}, v136
    s_cmp_lg_u32 s{NONCE}, 0
    s_cbranch_scc1 L_m_tagok
    buffer_load_dword v136, v15, s[60:63], 0 offen sc1
    s_add_u32 s5, s5, 1
    s_cmp_lt_u32 s5, {SPIN}
    s_waitcnt vmcnt(0)
    s_cbranch_scc1 L_m_tag
    v_mov_b32 v136, 1
    s_mov_b32 s{NONCE}, 1
L_m_tagok:
    ds_write_b32 v{MG.vZ}, v136 offset:{C_NONCE}
    s_waitcnt vmcnt(0)
    """)
    mbar(k)
    stamp(k, 2)
    k(f"""
    s_cmp_lg_u32 s33, 1
    s_cbranch_scc1 L_m_i4
    s_lshl_b32 s31, s28, 4
    s_add_u32 s31, s31, {FH}
    """)
    flag_store(k, 31, MG.T, MG.T+1)
    k("L_m_i4:")
    k("s_branch L_m_mid")
    k(f"""
L_loader:
    s_sub_u32 s33, s3, 4           ; lw
    s_lshl_b32 s28, s26, 16
    s_lshl_b32 s29, s33, 14
    s_add_u32 s28, s28, s29
    s_mul_i32 s29, s33, {16*3072}
    s_lshl_b32 s30, s27, 7
    s_add_u32 s29, s29, s30        ; w off
    v_lshrrev_b32 v3, 3, v2
    v_lshlrev_b32 v3, 10, v3
    v_lshrrev_b32 v4, 4, v2
    v_and_b32 v5, 7, v2
    v_xor_b32 v5, v5, v4
    v_lshl_add_u32 v3, v5, 4, v3   ; vXe
    v_xor_b32 v6, 64, v3
    v_add_u32 v6, 8192, v6
    """)
    dma_addr(k, 7, 3072, 4, 5)
    k(f"""
    v_add_u32 v8, {8*3072}, v7
    s_lshl_b32 s8, s7, 1
    s_add_u32 s8, s8, s6
    s_add_u32 s31, s7, s6
    s_cmp_lt_u32 {RM}, 8
    s_cselect_b32 s8, s31, s8
    s_and_b32 s31, s8, {RM-1}
    s_mov_b32 s8, 0
    s_lshl_b32 s10, s31, 7
    s_add_u32 s10, s10, s28
    s_mul_i32 s11, s31, {64*3072}
    s_add_u32 s11, s11, s29
    s_waitcnt lgkmcnt(0)
    """)
    srd(k, 12, P_X, 2048*512*2)
    srd(k, 16, P_WQKV, 512*1536*2)
    k("s_barrier")
    LR = 32
    def qload(st, q):
        i, ty = q >> 2, (q & 3) - 1
        d = vr(LR + st*32 + q*4, 4)
        if ty < 0: return f"buffer_load_dwordx4 {d}, v{6 if i else 3}, s[12:15], s10 offen"
        return f"buffer_load_dwordx4 {d}, v{8 if i else 7}, s[16:19], s11 offen offset:{ty*1024}"
    def qwrite(st, q):
        i, ty = q >> 2, (q & 3) - 1
        return f"ds_write_b128 v9, {vr(LR + st*32 + q*4, 4)} offset:{st*32768 + (ty+1)*8192 + i*1024}"
    def qnext():
        k(f"""
        s_add_u32 s8, s8, 1
        s_xor_b32 s11, s8, s31
        s_lshl_b32 s10, s11, 7
        s_add_u32 s10, s10, s28
        s_mul_i32 s11, s11, {64*3072}
        s_add_u32 s11, s11, s29
        """)
    for st in range(2):
        for q in range(8): k(qload(st, q))
        qnext()
    k(f"""
    s_lshl_b32 s4, s33, 2
    s_add_u32 s4, s4, {CNT + C_PROG}
    v_mov_b32 v11, s4              ; PROG[lw]
    v_mov_b32 v12, {CNT}
    v_mov_b32 v13, 0
    s_lshl_b32 s4, s33, 11
    s_add_u32 s4, s4, {RB}
    v_lshlrev_b32 v9, 4, v2
    v_add_u32 v9, s4, v9
    s_mov_b32 s9, 0                ; stage
    s_mov_b32 s34, 65536
    s_lshr_b32 s4, s24, 1
    s_lshl_b32 s4, s4, 7
    s_lshl_b32 s5, s25, 2
    s_add_u32 s4, s4, s5
    s_add_u32 s4, s4, s33
    s_mul_i32 s30, s4, {4*2752}
    s_and_b32 s5, s24, 1
    s_mul_i32 s5, s5, 1344
    s_add_u32 s30, s30, s5
    v_lshrrev_b32 v14, 4, v2
    v_mul_u32_u24 v14, 2752, v14
    v_and_b32 v15, 15, v2
    v_lshlrev_b32 v15, 7, v15
    v_min_u32 v15, 1532, v15
    v_add_u32 v14, v14, v15
    """)
    srd(k, 60, P_W1, 2048*1376*2)
    k("L_ld:")
    def sig():
        k(f"""
        v_add_u32 v13, 1, v13
        s_waitcnt lgkmcnt(0)
        s_mov_b64 exec, 1
        ds_write_b32 v11, v13
        s_mov_b64 exec, -1
        """)
    for st in range(2):
        nf = k.lab("nf");
        k(f"""
        s_cmp_lt_u32 s9, 4
        s_cbranch_scc1 {nf}
        s_sub_u32 s5, s9, 3
        """)
        lds_wait_min4(k, 12, C_FREE, 16, "s5", sleep=1)
        k(f"{nf}:")
        if st == 0:
            k("s_cmp_ge_u32 s9, 6")
            k("s_cbranch_scc1 L_ld_tail")
        for q in range(8):
            k(f"s_waitcnt vmcnt(15)")
            k(qwrite(st, q))
            k(qload(st, q))
        qnext()
        sig()
        TSG = int(os.environ.get("TSG", "3"))
        if "p" not in OPT and st == (TSG & 1):
            nt = k.lab("nt")
            k(f"""
            s_cmp_lg_u32 s9, {TSG}
            s_cbranch_scc1 {nt}
            buffer_load_dword v15, v14, s[60:63], s30 offen
{nt}:
            """)
        k("s_add_u32 s9, s9, 1")
    k(f"""
    v_add_u32 v9, s34, v9
    s_sub_u32 s34, 0, s34
    s_branch L_ld
L_ld_tail:
    """)
    for q in range(8):
        k(f"s_waitcnt vmcnt({15-q})")
        k(qwrite(0, q))
    sig()
    lds_wait_min4(k, 12, C_FREE, 16, 4, sleep=1)
    for q in range(8):
        k(f"s_waitcnt vmcnt({7-q})")
        k(qwrite(1, q))
    sig()
    srd(k, 20, P_WS, WS_BYTES)
    k(f"""
    s_mov_b32 s6, 8
    s_cmp_ge_u32 s25, 30
    s_cbranch_scc1 L_attn
    """)
    srd(k, 12, P_W1, 2048*1376*2)
    g1_ids(k, 4, 5, 6)
    k(f"""
    s_lshl_b32 s29, s6, 5
    s_add_u32 s29, s29, s33
    s_mul_i32 s29, s29, {16*2752}
    s_mul_i32 s7, s4, 192
    s_add_u32 s29, s29, s7         ; w1 src
    s_lshl_b32 s8, s5, 1
    s_add_u32 s8, s8, s4
    s_and_b32 s8, s8, 7            ; rotation
    s_mul_i32 s7, s33, 3072
    s_add_u32 s7, s7, {RB}
    """)
    for i in range(3):
        k(f"""
        v_add_u32 v8, {64*i}, v2
        v_mul_u32_u24 v9, 43691, v8
        v_lshrrev_b32 v9, 19, v9       ; row = p/12
        v_mul_u32_u24 v10, 12, v9
        v_sub_u32 v8, v8, v10
        v_mul_u32_u24 v9, 2752, v9
        v_lshl_add_u32 v{4+i}, v8, 4, v9
        """)
    if "s" in OPT: lds_wait(k, 12, C_STD, 16, 4, sleep=1)
    for j in range(8):
        if j % 2 == 0 and "s" not in OPT: lds_wait_min4(k, 12, C_FREE, 16, 5 + j//2, sleep=1)
        k(f"""
        s_mul_i32 s11, s8, {64*2752}
        s_add_u32 s11, s11, s29
        s_add_u32 s8, s8, 1
        s_and_b32 s8, s8, 7
        """)
        for i in range(3):
            k(f"s_add_u32 m0, s7, {j*16384 + i*1024}")
            k("s_nop 0")
            k(f"buffer_load_dwordx4 v{4+i}, s[12:15], s11 offen lds")
        if j >= 3:
            k("s_waitcnt vmcnt(9)")
            sig()
    for j in range(3):
        k(f"s_waitcnt vmcnt({6-3*j})")
        sig()
    k("s_mov_b32 s6, 9")
    k("s_branch L_attn")
    vXa = 8; vWa = 12; vH = 13; vW1 = 14
    ACC = 32; FX = 80; FW = 88; SD = 112
    k(f"""
L_comp:
    {"s_endpgm" if ("Q" in OPT and "C" not in OPT) else ""}
    {"" if "C" in OPT else "s_barrier"}
    s_and_b32 s32, s3, 1           ; tg
    s_lshr_b32 s33, s3, 1          ; hp
    v_and_b32 v19, 31, v2
    v_lshrrev_b32 v15, 5, v2
    v_lshrrev_b32 v16, 1, v19
    v_and_b32 v16, 7, v16
    s_lshl_b32 s8, s32, 12
    s_add_u32 s8, s8, {RB}
    v_lshl_add_u32 v17, v19, 7, s8
    """)
    for ks in range(4):
        k(f"""
        v_add_u32 v18, {2*ks}, v15
        v_xor_b32 v18, v18, v16
        v_lshl_add_u32 v{vXa+ks}, v18, 4, v17
        """)
    tr_addr(k, vWa, False, 16, 17)
    k(f"""
    s_lshl_b32 s8, s33, 6
    v_xor_b32 v{vWa}, s8, v{vWa}
    v_add_u32 v{vWa}, {RB + 8192}, v{vWa}
    v_lshlrev_b32 v20, 4, v2
    s_lshl_b32 s8, s33, 13
    s_lshl_b32 s9, s32, 10
    s_add_u32 s8, s8, s9
    s_add_u32 s8, s8, {RB}
    v_add_u32 v{vH}, s8, v20
    v_bfe_u32 v16, v2, 2, 2
    v_lshl_add_u32 v16, v15, 3, v16
    v_mul_u32_u24 v{vW1}, 192, v16
    v_bfe_u32 v16, v2, 4, 1
    v_lshl_add_u32 v{vW1}, v16, 5, v{vW1}
    v_and_b32 v16, 3, v2
    v_lshl_add_u32 v{vW1}, v16, 3, v{vW1}
    v_add_u32 v{vW1}, {RB}, v{vW1}
    """)
    for i in range(48): k(f"v_mov_b32 v{ACC+i}, 0")
    k(f"""
    v_and_b32 v21, 0x33, v2
    v_bfe_u32 v23, v2, 2, 1
    v_lshl_or_b32 v21, v23, 3, v21
    v_bfe_u32 v23, v2, 3, 1
    v_lshl_or_b32 v21, v23, 2, v21
    v_lshlrev_b32 v21, 4, v21
    v_bfe_u32 v22, v2, 4, 1
    v_lshlrev_b32 v22, 17, v22
    v_lshl_add_u32 v22, v15, 9, v22
    v_and_b32 v23, 15, v2
    v_lshl_add_u32 v22, v23, 4, v22
    s_lshl_b32 s8, s27, 1
    s_add_u32 s8, s8, s33
    s_lshl_b32 s9, s26, 1
    s_add_u32 s9, s9, s32          ; tile
    s_lshl_b32 s28, s8, 17
    s_lshl_b32 s10, s9, 10
    s_add_u32 s28, s28, s10
    s_lshl_b32 s29, s28, 1
    s_add_u32 s29, s29, {KV}       ; K off
    s_lshl_b32 s30, s8, 13
    s_lshl_b32 s10, s9, 7
    s_add_u32 s30, s30, s10
    s_add_u32 s30, s30, {F1}
    s_mov_b32 s10, {f32(0.25*LOG2E)}
    s_mov_b32 s11, s10
    s_mov_b32 s34, 65536
    v_mov_b32 v24, {CNT}
    s_waitcnt lgkmcnt(0)
    """)
    srd(k, 20, P_WS, WS_BYTES)
    def reads_q(sl, ks, buf):
        out = [f"ds_read_b128 {vr(FX+buf*4,4)}, v{vXa+ks} offset:{sl*32768}"]
        for ty in range(3):
            for u in range(2):
                out.append(f"ds_read_b64_tr_b16 {vr(FW+buf*12+ty*4+u*2,2)}, v{vWa} offset:{sl*32768+ty*8192+ks*2048+u*512}")
        return out
    def reads_g(sl, ks, buf):
        out = [f"ds_read_b128 {vr(FX+buf*4,4)}, v{vH} offset:{sl*32768+ks*2048}"]
        for j in range(3):
            for u in range(2):
                out.append(f"ds_read_b64_tr_b16 {vr(FW+buf*12+j*4+u*2,2)}, v{vW1} offset:{sl*32768+ks*3072+u*768+j*64}")
        return out
    PG = 28
    def boundary(last_label):
        ok = k.lab("ok")
        k(f"""
        v_add_u32 v26, 1, v26
        v_min3_u32 v{PG}, v{PG}, v{PG+1}, v{PG+2}
        s_mov_b64 exec, 1
        ds_write_b32 v27, v26
        s_mov_b64 exec, -1
        v_min_u32 v{PG}, v{PG}, v{PG+3}
        s_add_u32 s8, s8, 1
        """)
        if last_label:
            k("s_cmp_ge_u32 s9, 4")
            k(f"s_cbranch_scc1 {last_label}")
        k(f"""
        v_readfirstlane_b32 s4, v{PG}
        s_add_u32 s5, s8, 1
        s_cmp_ge_u32 s4, s5
        s_cbranch_scc1 {ok}
        """)
        if "C" not in OPT: lds_wait_min4(k, 24, C_PROG, PG, "s5")
        k(".p2align 3")
        k(f"{ok}:")
    def gloop(nm, reads, is_q, aregs, mid=None):
        k("s_mov_b32 s9, 0")
        k(".p2align 3")
        k(f"L_{nm}loop:")
        for sl in range(2):
            for ks in range(4):
                buf = ks & 1
                def mf(ty):
                    x = vr(FX+buf*4, 4)
                    a = ACC + ty*16; w = vr(FW+buf*12+ty*4, 4)
                    if is_q and ty == 2: k(f"v_mfma_f32_32x32x16_bf16 {vr(a,16)}, {x}, {w}, {vr(a,16)}")
                    else:                k(f"v_mfma_f32_32x32x16_bf16 {vr(a,16)}, {w}, {x}, {vr(a,16)}")
                def w(n): k(f"s_waitcnt lgkmcnt({n})"); k("s_nop 0")
                if ks < 3:
                    r = reads(sl, ks+1, buf ^ 1)
                    w(4); mf(0); k.emit(r[0:3])
                    w(5); mf(1); k.emit(r[3:5])
                    w(5); mf(2); k.emit(r[5:7])
                elif sl == 0:
                    r = reads(1, 0, buf ^ 1)
                    w(4); mf(0)
                    k(f"ds_read_b128 {vr(PG,4)}, v24 offset:{C_PROG}")
                    w(3); mf(1)
                    k("s_waitcnt lgkmcnt(0)")
                    boundary(None)
                    k.emit(r[0:3]); mf(2); k.emit(r[3:7])
                    if mid: mid()
                else:
                    r = reads(0, 0, buf ^ 1)
                    w(4); mf(0)
                    k(f"ds_read_b128 {vr(PG,4)}, v24 offset:{C_PROG}")
                    for a in aregs: k(f"v_add_u32 v{a}, s34, v{a}")
                    k(f"""
                    s_sub_u32 s34, 0, s34
                    s_add_u32 s9, s9, 1
                    s_waitcnt lgkmcnt(3)
                    .p2align 3
                    """)
                    mf(1)
                    k("s_waitcnt lgkmcnt(0)")
                    boundary(f"L_{nm}last")
                    k.emit(r[0:3]); mf(2); k.emit(r[3:7])
                    k(f"s_branch L_{nm}loop")
                    k(f"L_{nm}last:")
                    mf(2)
    k(f"""
    s_lshl_b32 s4, s3, 2
    s_add_u32 s4, s4, {CNT + C_FREE}
    v_mov_b32 v27, s4
    v_mov_b32 v26, 0
    s_mov_b32 s8, 0
    """)
    stamp(k, 1)
    if "C" not in OPT: lds_wait_min4(k, 24, C_PROG, PG, 1)
    else: k("s_sleep 90")
    stamp(k, 2)
    k.emit(reads_q(0, 0, 0))
    gloop("q", reads_q, True, range(vXa, vXa+5))
    if "C" in OPT:
        for i in range(3, 12): stamp(k, i)
        stamp_flush(k, 12)
        k("s_endpgm")
    lds_wait(k, 24, C_NONCE, 25, 1, sleep=0, st=NONCE)
    k("s_nop 8")
    stamp(k, 3)
    for ty in (1, 2, 0):
        a = ACC + ty*16
        if ty == 0:
            for r in range(0, 16, 2): k(f"v_pk_mul_f32 {vr(a+r,2)}, {vr(a+r,2)}, s[10:11]")
        for half in range(2):
            d = SD + (ty*2+half)*4
            for j in range(4):
                k(f"v_cvt_pk_bf16_f32 v{d+j}, v{a+half*8+2*j}, v{a+half*8+2*j+1}")
            if ty == 0:
                k(f"s_add_u32 s31, s28, {half*65536}")
                k(f"buffer_store_dwordx4 {vr(d,4)}, v20, s[20:23], s31 offen sc1")
            elif ty == 1:
                k(f"s_add_u32 s31, s29, {half*131072}")
                k(f"buffer_store_dwordx4 {vr(d,4)}, v21, s[20:23], s31 offen sc1")
            else:
                k(f"buffer_store_dwordx4 {vr(d,4)}, v22, s[20:23], s29 offen offset:{1024+half*256} sc1")
    stamp(k, 4)
    for i in range(48): k(f"v_mov_b32 v{ACC+i}, 0")
    def f1pub(vm):
        k(f"""
        v_mov_b32 v25, 0
        v_mov_b32 v19, s{NONCE}
        v_mov_b32 v18, 1
        s_waitcnt vmcnt({vm})
        s_mov_b64 exec, 1
        buffer_store_dword v19, v25, s[20:23], s30 offen sc1
        ds_add_u32 v24, v18 offset:{C_PUB}
        s_mov_b64 exec, -1
        """)
    k("v_mov_b32 v18, 1")
    lds_add(k, 24, 18, [C_STD])
    k(f"""
    s_mov_b32 s7, 0
    ds_read_b32 v{PG}, v24 offset:{C_H}
    """)
    g1_ids(k, 4, 5, 6)
    k(f"""
    s_lshl_b32 s28, s5, 1
    s_add_u32 s28, s28, s33
    s_lshl_b32 s28, s28, 18        ; dt*262144
    s_lshl_b32 s29, s6, 16
    s_add_u32 s28, s28, s29
    s_lshl_b32 s29, s32, 10
    s_add_u32 s28, s28, s29
    s_add_u32 s28, s28, {HF}
    s_lshl_b32 s8, s5, 1
    s_add_u32 s8, s8, s4
    s_and_b32 s8, s8, 7            ; rotation
    v_add_u32 v21, 4096, v20
    s_waitcnt lgkmcnt(0)
    v_readfirstlane_b32 s4, v{PG}
    s_cmp_lg_u32 s4, 0
    s_cbranch_scc1 L_c_g1
    """)
    f1pub(0)
    k(f"""
    s_cmp_lt_u32 s25, 30
    s_cbranch_scc1 L_c_g1w
    """)
    stamp(k, 5)
    k("s_branch L_attn")
    k("L_c_g1w:")
    k("s_mov_b32 s7, 1")
    lds_wait(k, 24, C_H, PG, 1, sleep=1)
    k("L_c_g1:")
    HB = 136
    def hload(st, ks):
        return f"buffer_load_dwordx4 {vr(HB+st*16+ks*4,4)}, v{21 if ks >= 2 else 20}, s[20:23], s29 offen offset:{(ks&1)*2048} sc1"
    def hnext():
        k("""
        s_lshl_b32 s29, s8, 13
        s_add_u32 s29, s29, s28
        s_add_u32 s8, s8, 1
        s_and_b32 s8, s8, 7
        """)
    for st in range(2):
        hnext()
        for ks in range(4): k(hload(st, ks))
    hnext()
    k("""
    s_cmp_lg_u32 s7, 0
    s_cbranch_scc1 L_c_nofl
    """)
    f1pub(8)
    k("L_c_nofl:")
    def wr(sl, ks, buf):
        return [f"ds_read_b64_tr_b16 {vr(FW+buf*12+j*4+u*2,2)}, v{vW1} offset:{sl*16384+ks*3072+u*768+j*64}" for j in range(3) for u in range(2)]
    lds_wait_min4(k, 24, C_PROG, PG, 9)
    k.emit(wr(0, 0, 0))
    k("s_mov_b32 s9, 0")
    k("s_mov_b32 s31, 10")
    for it in range(2):
        if it == 0:
            k(".p2align 3")
            k("L_gloop:")
        for sl in range(2):
            for ks in range(4):
                buf = ks & 1
                first = False
                def mf(j):
                    a = ACC + j*16
                    k(f"v_mfma_f32_32x32x16_bf16 {vr(a,16)}, {vr(FW+buf*12+j*4,4)}, {vr(HB+sl*16+ks*4,4)}, {vr(a,16)}")
                lastk = (it == 1 and sl == 1 and ks == 3)
                r = [] if lastk else (wr(sl, ks+1, buf ^ 1) if ks < 3 else wr(sl+1, 0, buf ^ 1))
                vm = 7 if it == 0 else 7 - (sl*4 + ks)
                k(f"s_waitcnt vmcnt({vm}) lgkmcnt(4)")
                k("s_nop 0")
                mf(0)
                if ks == 3 and not lastk:
                    ok = k.lab("gok")
                    k(f"""
                    v_min3_u32 v{PG}, v{PG}, v{PG+1}, v{PG+2}
                    v_min_u32 v{PG}, v{PG}, v{PG+3}
                    s_nop 0
                    v_readfirstlane_b32 s4, v{PG}
                    s_cmp_ge_u32 s4, s31
                    s_cbranch_scc1 {ok}
                    """)
                    lds_wait_min4(k, 24, C_PROG, PG, "s31")
                    k(f"{ok}:")
                    k("s_add_u32 s31, s31, 1")
                    k(".p2align 3")
                if ks == 2: k(f"ds_read_b128 {vr(PG,4)}, v24 offset:{C_PROG}")
                k.emit(r[0:2])
                k(f"s_waitcnt lgkmcnt({(5 if ks == 2 else 4) if r else 2})")
                k("s_nop 0")
                mf(1); k.emit(r[2:4])
                k(f"s_waitcnt lgkmcnt({(5 if ks == 2 else 4) if r else 0})")
                k("s_nop 0")
                mf(2); k.emit(r[4:6])
                if it == 0: k(hload(sl, ks))
            if it == 0: hnext()
        if it == 0:
            k(f"""
            v_add_u32 v{vW1}, 32768, v{vW1}
            s_add_u32 s9, s9, 1
            s_cmp_lt_u32 s9, 3
            s_cbranch_scc1 L_gloop
            """)
    k(f"""
    v_add_u32 v26, 1, v26
    s_mov_b64 exec, 1
    ds_write_b32 v27, v26
    s_mov_b64 exec, -1
    """)
    g1_ids(k, 4, 5, 6)
    k(f"""
    s_mul_i32 s10, s5, 15
    s_add_u32 s10, s10, s4
    s_lshl_b32 s10, s10, 2
    s_add_u32 s10, s10, s3         ; (dq*15+fb)*4+g
    s_mul_i32 s10, s10, {3*8192}
    s_lshl_b32 s11, s6, 11
    s_add_u32 s10, s10, s11
    s_add_u32 s10, s10, {PF}
    s_lshl_b32 s11, s5, 4
    s_add_u32 s11, s11, s4
    s_lshl_b32 s11, s11, 2
    s_add_u32 s11, s11, s3
    s_lshl_b32 s11, s11, 2
    s_add_u32 s11, s11, s6
    s_lshl_b32 s11, s11, 7
    s_add_u32 s11, s11, {FP}
    s_mov_b32 s7, 1
    """)
    for j in range(24): k(f"v_cvt_pk_bf16_f32 v{SD+j}, v{ACC+2*j}, v{ACC+2*j+1}")
    stamp(k, 5)
    Q, C, O, S0, S1, K0, K1, V0a, V0b, V1 = 4, 8, 24, 40, 56, 72, 76, 80, 84, 88
    IDX, AK, AV0, AV1, T0, T1, VZ, VC, L16, ONE = 92, 93, 94, 95, 96, 97, 98, 99, 100, 101
    S = [S0, S1]; V0 = [V0a, V0b]; KF = [K0, K1]
    def attn_ids(k):
        k(f"""
        s_lshl_b32 s26, s24, 2
        s_lshr_b32 s27, s25, 3
        s_add_u32 s26, s26, s27        ; head
        s_and_b32 s27, s25, 7
        s_lshl_b32 s27, s27, 3         ; qb*8
        """)
    k("L_attn:")
    k(f"""
    v_lshlrev_b32 v{L16}, 4, v2
    v_mov_b32 v{VZ}, {CNT}
    """)
    attn_ids(k)
    k(f"""
    s_add_u32 s27, s27, s3         ; qtile
    v_mov_b32 v{IDX}, 0xdddddddd
    v_mov_b32 v{VC}, {CNT + 4}
    v_mov_b32 v{ONE}, 1
    s_mov_b32 s8, 0
    s_mov_b32 s9, 0
    s_cmp_lt_u32 s3, 4
    s_cbranch_scc1 L_a_c0
    s_mov_b32 s7, 0
    s_lshl_b32 s28, s26, 17
    s_lshl_b32 s29, s3, 12
    s_add_u32 s28, s28, s29
    s_add_u32 s28, s28, {KV}
    s_mul_i32 s29, s3, {2*KVP}
    """)
    lds_wait_min4(k, VZ, C_FREE, S0, "s6")
    lds_wait(k, VZ, C_GO, T0, 1, sleep=0)
    def kvdma(c):
        out = []
        for i in range(2):
            out += [f"s_add_u32 m0, s29, {(8*c+i)*KVP}",
                    f"s_add_u32 s32, s28, {(8*c+i)*2048}",
                    f"buffer_load_dwordx4 v{L16}, s[20:23], s32 offen sc1 lds",
                    f"buffer_load_dwordx4 v{L16}, s[20:23], s32 offen offset:1024 sc1 lds"]
        return out
    k.emit(kvdma(0)); k.emit(kvdma(1))
    k(f"""
    v_mul_u32_u24 v{T0}, {KVP}, v2
    v_mov_b32 v{S0}, 0x3f803f80
    v_mov_b32 v{S0+1}, 0x3f803f80
    v_mov_b32 v{S0+2}, 0x3f803f80
    v_mov_b32 v{S0+3}, 0x3f803f80
    ds_write_b128 v{T0}, {vr(S0,4)} offset:2048
    """)
    get_nonce(k, VZ, T0)
    for c in range(1, 8):
        if c + 2 <= 7:
            k.emit(kvdma(c+1))
            k("s_waitcnt vmcnt(8)")
        else:
            k(f"s_waitcnt vmcnt({(7-c)*4})")
        lds_add(k, VZ, ONE, [4*c, C_ALL])
    k("L_a_c0:")
    lds_wait(k, VZ, C_C0, T0, 4, sleep=0)
    stamp(k, 6)
    k(f"""
    s_lshl_b32 s4, s3, 10
    s_add_u32 s4, s4, {QST}
    v_add_u32 v{T0}, s4, v{L16}
    ds_read_b128 {vr(K0,4)}, v{L16}
    ds_read_b128 {vr(Q,4)}, v{T0}
    s_waitcnt lgkmcnt(0)
    v_mfma_f32_32x32x16_bf16 {vr(S0,16)}, {vr(K0,4)}, {vr(Q,4)}, 0
    s_mov_b64 exec, 1
    ds_add_u32 v{VZ}, v{ONE} offset:{C_QRD}
    s_mov_b64 exec, -1
    s_nop 12
    v_max3_f32 v{T0}, v{S0}, v{S0+1}, v{S0+2}
    """)
    for j in range(3, 15, 2): k(f"v_max3_f32 v{T0}, v{T0}, v{S0+j}, v{S0+j+1}")
    k(f"v_max_f32 v{T0}, v{T0}, v{S0+15}")
    k("L_a_setmax:")
    k(f"""
    v_mov_b32 v{T1}, v{T0}
    v_mov_b32 v{AK}, v{L16}
    v_and_b32 v{C}, 16, v2
    v_permlane32_swap_b32 v{T0}, v{T1}
    v_cmp_eq_u32 vcc, 0, v{C}
    v_mov_b32 v{C}, 1024
    v_mov_b32 v{C+1}, 768
    v_max_f32 v{T0}, v{T0}, v{T1}
    v_cndmask_b32 v{AV0}, v{C}, v{L16}, vcc
    v_cndmask_b32 v{AV1}, v{C+1}, v{L16}, vcc
    s_nop 0
    ds_read_b128 {vr(K0,4)}, v{AK}
    ds_read_b128 {vr(V0a,4)}, v{AV0} offset:1024
    ds_read_b128 {vr(V1,4)}, v{AV0} offset:1024
    ds_read_b128 {vr(K1,4)}, v{AK} offset:{KVP}
    """)
    for r in range(16): k(f"v_sub_f32 v{C+r}, 0, v{T0}")
    for r in range(16): k(f"v_mov_b32 v{O+r}, 0")
    for r in range(8): k(f"v_mov_b32 v{S1+8+r}, 0")
    k(f"""
    s_waitcnt lgkmcnt(0)
    v_mfma_f32_32x32x16_bf16 {vr(S0,16)}, {vr(K0,4)}, {vr(Q,4)}, {vr(C,16)}
    ds_read_b128 {vr(K0,4)}, v{AK} offset:{2*KVP}
    s_mov_b32 s33, 0
    s_setprio {3 if "L" in OPT else 2}
    s_nop 10
    """)
    stamp(k, 7)
    k(".p2align 6")
    k("L_a_loop:")
    NT = 16
    for t in range(NT):
        cur = S[t & 1]; prv = S[(t+1) & 1]
        e = lambda a, b: [f"v_exp_f32 v{cur+i}, v{cur+i}" for i in range(a, b)]
        k.emit(e(0, 2))
        k(f"v_smfmac_f32_32x32x32_bf16 {vr(O,16)}, {vr(V1,4)}, {vr(prv+8,8)}, v{IDX}")
        k(f"ds_read_b128 {vr(V1,4)}, v{AV1} offset:{t*KVP+1024+256}")
        k(f"ds_read_b128 {vr(V0[(t+1)&1],4)}, v{AV0} offset:{(t+1)*KVP+1024}")
        k.emit(e(2, 6))
        k(f"v_mfma_f32_32x32x16_bf16 {vr(prv,16)}, {vr(KF[(t+1)&1],4)}, {vr(Q,4)}, {vr(C,16)}")
        k(f"ds_read_b128 {vr(KF[(t+1)&1],4)}, v{AK} offset:{(t+3)*KVP}")
        k.emit(e(6, 12))
        k(f"v_smfmac_f32_32x32x32_bf16 {vr(O,16)}, {vr(V0[t&1],4)}, {vr(cur,8)}, v{IDX}")
        k("s_waitcnt lgkmcnt(1)")
        if t % 8 == 4: k("s_cmp_lg_u32 s9, 0")
        elif t == 6: k("s_cmp_eq_u32 s7, 0")
        elif t == 8: k("s_cmp_lg_u32 s33, 2")
        elif t == 13: k("s_cmp_lg_u32 s33, 3")
        elif t == NT-2: k("s_add_u32 s33, s33, 1")
        elif t == NT-1: k(f"s_cmp_lt_u32 s33, {64//NT}")
        else: k("s_nop 0")
        k.emit(e(12, 16))
        if t % 8 == 4:
            sk = k.lab("rdy"); pl = k.lab("poll")
            k(f"""
            s_cbranch_scc1 {sk}
{pl}:
            ds_read_b32 v{T0}, v{VC}
            ds_read_b32 v{T1}, v{VZ} offset:{C_ALL}
            s_waitcnt lgkmcnt(0)
            v_readfirstlane_b32 s4, v{T0}
            v_readfirstlane_b32 s5, v{T1}
            s_cmp_lt_u32 s4, 4
            s_cbranch_scc1 {pl}
            s_cmp_ge_u32 s5, 28
            s_cselect_b32 s9, 1, 0
            v_add_u32 v{VC}, 4, v{VC}
            .p2align 3
{sk}:
            """)
        if t == 6:
            k(f"""
            s_cbranch_scc0 L_a_pub
            s_nop 0
L_a_pubret:
            """)
        if t in (8, 13):
            sk = k.lab("lad")
            k(f"""
            s_cbranch_scc1 {sk}
            s_setprio {(1 if t == 8 else 0) + (1 if "L" in OPT else 0)}
{sk}:
            """)
    k(f"""
    v_add_u32 v{AK}, {NT*KVP}, v{AK}
    v_add_u32 v{AV0}, {NT*KVP}, v{AV0}
    v_add_u32 v{AV1}, {NT*KVP}, v{AV1}
    s_cbranch_scc1 L_a_loop
    v_smfmac_f32_32x32x32_bf16 {vr(O,16)}, {vr(V1,4)}, {vr(S1+8,8)}, v{IDX}
    s_waitcnt lgkmcnt(0)
    s_setprio 3
    s_nop 15
    s_cmp_lg_u32 s8, 0
    s_cbranch_scc1 L_a_fin
    v_max3_f32 v{T0}, abs(v{O}), abs(v{O+1}), abs(v{O+2})
    v_max3_f32 v{T0}, v{T0}, abs(v{O+3}), abs(v{O+4})
    v_max3_f32 v{T0}, v{T0}, abs(v{O+5}), abs(v{O+6})
    v_max_f32 v{T0}, v{T0}, abs(v{O+7})
    v_add_f32 v{T1}, v{O}, v{O+1}
    v_add_f32 v{T1}, v{T1}, v{O+2}
    v_add_f32 v{T1}, v{T1}, v{O+3}
    v_add_f32 v{T1}, v{T1}, v{O+4}
    v_add_f32 v{T1}, v{T1}, v{O+5}
    v_add_f32 v{T1}, v{T1}, v{O+6}
    v_add_f32 v{T1}, v{T1}, v{O+7}
    s_mov_b32 s4, {f32(2.0**40)}
    s_mov_b32 s5, {f32(2.0**120)}
    v_cmp_gt_f32 vcc, s4, v{O+8}
    v_cmp_gt_f32 s[6:7], s5, v{T0}
    v_cmp_o_f32 s[10:11], v{T1}, v{T1}
    s_and_b64 vcc, vcc, s[6:7]
    s_and_b64 vcc, vcc, s[10:11]
    s_cmp_eq_u64 vcc, exec
    s_cbranch_scc1 L_a_fin
    s_mov_b32 s7, 0
    s_mov_b32 s8, 1
    s_mov_b32 s9, 1
    v_mov_b32 v{AK}, v{L16}
    v_mov_b32 v{T0}, 0xff800000
    s_mov_b32 s33, 0
L_a_maxloop:
    ds_read_b128 {vr(K0,4)}, v{AK}
    s_waitcnt lgkmcnt(0)
    v_mfma_f32_32x32x16_bf16 {vr(S0,16)}, {vr(K0,4)}, {vr(Q,4)}, 0
    v_add_u32 v{AK}, {KVP}, v{AK}
    s_nop 15
    """)
    for j in range(0, 16, 2): k(f"v_max3_f32 v{T0}, v{T0}, v{S0+j}, v{S0+j+1}")
    k(f"""
    s_add_u32 s33, s33, 1
    s_cmp_lt_u32 s33, 64
    s_cbranch_scc1 L_a_maxloop
    s_branch L_a_setmax
L_a_pub:
    s_cmp_eq_u32 s7, 2
    s_cbranch_scc1 L_a_pub2
    s_mov_b32 s7, 2
    """)
    for j in range(3):
        k(f"s_add_u32 s4, s10, {j*8192}")
        k(f"buffer_store_dwordx4 {vr(SD+8*j,4)}, v{L16}, s[20:23], s4 offen sc1")
        k(f"buffer_store_dwordx4 {vr(SD+8*j+4,4)}, v{L16}, s[20:23], s4 offen offset:1024 sc1")
    k("s_branch L_a_pubret")
    k("L_a_pub2:")
    k("s_mov_b32 s7, 0")
    flag_store(k, 11, T0, T1)
    k(f"""
    s_branch L_a_pubret
L_a_fin:
    v_rcp_f32 v{T0}, v{O+8}
    """)
    lds_add(k, VZ, ONE, [C_DONE])
    stamp(k, 8)
    k(f"""
    s_lshr_b32 s4, s27, 1
    s_lshl_b32 s4, s4, 6
    s_lshl_b32 s5, s26, 1
    s_add_u32 s4, s4, s5
    s_and_b32 s5, s27, 1
    s_add_u32 s4, s4, s5           ; (st*32+h)*2+sg
    s_lshl_b32 s30, s4, 10
    s_add_u32 s30, s30, {OF}
    s_lshl_b32 s31, s4, 7
    s_add_u32 s31, s31, {FO_}
    """)
    for r in range(8): k(f"v_mul_f32 v{O+r}, v{O+r}, v{T0}")
    for j in range(4): k(f"v_cvt_pk_bf16_f32 v{K0+j}, v{O+2*j}, v{O+2*j+1}")
    k(f"buffer_store_dwordx4 {vr(K0,4)}, v{L16}, s[20:23], s30 offen sc1")
    flag_store(k, 31, T0, T1)
    stamp(k, 9)
    k(f"""
    s_cmp_ge_u32 s3, 4
    s_cbranch_scc1 L_f_load
    """)
    stamp(k, 10); stamp(k, 11)
    stamp_flush(k, 12)
    k("s_endpgm")
    def final_ids(k):
        k(f"""
        s_lshr_b32 s26, s24, 1
        s_lshl_b32 s26, s26, 3
        s_lshr_b32 s27, s25, 2
        s_add_u32 s26, s26, s27
        s_and_b32 s27, s24, 1
        s_lshl_b32 s27, s27, 2
        s_and_b32 s4, s25, 3
        s_add_u32 s27, s27, s4
        """)
    k("L_f_load:")
    final_ids(k)
    srd(k, 12, P_WO, 512*512*2)
    dma_addr(k, 4, 1024, 5, 6)
    k(f"""
    s_sub_u32 s33, s3, 4
    s_lshl_b32 s30, s33, 12
    s_lshl_b32 s28, s26, 16
    s_add_u32 s28, s28, s30
    s_add_u32 s28, s28, {OF}
    s_lshl_b32 s29, s33, 15
    s_lshl_b32 s31, s27, 7
    s_add_u32 s29, s29, s31
    """)
    lds_wait(k, VZ, C_DONE, T0, 8)
    for j in range(4):
        for i in range(4):
            k(f"s_add_u32 m0, s30, {j*32768 + 16384 + i*1024}")
            k(f"s_add_u32 s31, s29, {j*131072 + i*8192}")
            k(f"buffer_load_dwordx4 v4, s[12:15], s31 offen lds")
    stamp(k, 10)
    k(f"""
    s_cmp_lg_u32 s3, 4
    s_cbranch_scc1 L_f_wait
    s_lshl_b32 s31, s26, 13
    s_add_u32 s31, s31, {FO_}
    v_lshlrev_b32 v{T1}, 7, v2
    """)
    flag_poll(k, T1, 31, T0, sleep=1)
    lds_add(k, VZ, ONE, [C_GO2])
    k("s_branch L_f_go")
    k("L_f_wait:")
    lds_wait(k, VZ, C_GO2, T0, 1, sleep=0)
    k("L_f_go:")
    stamp(k, 11)
    for j in range(4):
        k(f"s_add_u32 m0, s30, {j*32768}")
        k(f"s_add_u32 s31, s28, {j*16384}")
        for i in range(4):
            k(f"buffer_load_dwordx4 v{L16}, s[20:23], s31 offen offset:{i*1024} sc1 lds")
    for j in range(4):
        k(f"s_waitcnt vmcnt({12-4*j})")
        lds_add(k, VZ, ONE, [C_ST+4*j])
    stamp_flush(k, 12)
    k("s_endpgm")

    k("L_m_mid:")
    k(f"""
    v_lshlrev_b32 v15, 7, v2
    s_cmp_lg_u32 s33, 0
    s_cbranch_scc1 L_m_i5
    s_cmp_ge_u32 s25, 30
    s_cbranch_scc1 L_m_i5
    s_lshr_b32 s31, s24, 1
    s_lshl_b32 s31, s31, 13
    s_add_u32 s31, s31, {FH}
    """)
    lds_wait_min4(k, MG.vZ, C_FREE, MG.T, int(os.environ.get("HP", "6")), sleep=3)
    flag_poll(k, 15, 31, MG.T, sleep=2)
    lds_add(k, MG.vZ, MG.vOne, [C_H])
    k("L_m_i5:")
    stamp(k, 3)
    attn_ids(k)
    k(f"""
    s_lshl_b32 s28, s26, 17
    s_lshl_b32 s29, s33, 12
    s_add_u32 s28, s28, s29
    s_add_u32 s28, s28, {KV}
    s_mul_i32 s29, s33, {2*KVP}
    s_lshl_b32 s30, s26, 16
    s_lshl_b32 s4, s27, 10
    s_add_u32 s30, s30, s4
    s_lshl_b32 s4, s33, 11
    s_add_u32 s30, s30, s4
    s_add_u32 s6, s4, {QST}
    s_cmp_lg_u32 s33, 0
    s_cbranch_scc1 L_m_j2
    s_lshr_b32 s31, s26, 1
    s_lshl_b32 s31, s31, 13
    s_add_u32 s31, s31, {F1}
    """)
    lds_wait(k, MG.vZ, C_PUB, MG.T, 4, sleep=2)
    flag_poll(k, 15, 31, MG.T, sleep=1)
    lds_add(k, MG.vZ, MG.vOne, [C_GO])
    k("L_m_j2:")
    lds_wait(k, MG.vZ, C_PUB, MG.T, 4, sleep=6)
    lds_wait(k, MG.vZ, C_GO, MG.T, 1, sleep=1)
    stamp(k, 4)
    k(f"""
    s_mov_b32 m0, s6
    s_add_u32 s32, s28, 2048
    buffer_load_dwordx4 v{MG.vL16}, s[20:23], s30 offen sc1 lds
    buffer_load_dwordx4 v{MG.vL16}, s[20:23], s30 offen offset:1024 sc1 lds
    s_mov_b32 m0, s29
    s_nop 0
    buffer_load_dwordx4 v{MG.vL16}, s[20:23], s28 offen sc1 lds
    buffer_load_dwordx4 v{MG.vL16}, s[20:23], s28 offen offset:1024 sc1 lds
    s_add_u32 m0, s29, {KVP}
    s_nop 0
    buffer_load_dwordx4 v{MG.vL16}, s[20:23], s32 offen sc1 lds
    buffer_load_dwordx4 v{MG.vL16}, s[20:23], s32 offen offset:1024 sc1 lds
    s_waitcnt vmcnt(0)
    """)
    lds_add(k, MG.vZ, MG.vOne, [C_C0])
    stamp(k, 5)
    k(f"""
    s_setprio {0 if "L" in OPT else 3}
    s_mul_i32 s30, s33, 6144
    s_add_u32 s30, s30, {MRING}
    v_add_u32 v{MG.vWr}, s30, v{MG.vL16}
    s_lshr_b32 s8, s33, 1          ; a
    s_and_b32 s9, s33, 1           ; b
    """)
    for r in range(1, 4):
        k(f"""
        s_xor_b32 s31, s33, {r}
        s_mul_i32 s31, s31, 6144
        s_add_u32 s31, s31, {MRING}
        v_add_u32 v{MG.vRd+r-1}, s31, v{MG.vL16}
        """)
    srd(k, 16, P_B1, 1376*2)
    srd(k, 60, P_W2, 1376*2048*2)
    srd(k, 12, P_WO, 512*512*2)
    lds_wait(k, MG.vZ, C_QRD, MG.T, 8, sleep=2)
    k(f"""
    s_cmp_lg_u32 s33, 3
    s_cbranch_scc1 L_m_red
    """)
    if "p" not in OPT:
        k(f"""
        v_lshrrev_b32 v128, 3, v2
        v_and_b32 v129, 7, v2
        v_lshlrev_b32 v130, 12, v128
        v_lshl_add_u32 v130, v129, 7, v130
        s_lshr_b32 s27, s24, 1
        s_lshl_b32 s27, s27, 10
        s_mov_b32 s28, s25
L_m_pf2:
        s_lshl_b32 s10, s28, 15
        s_add_u32 s10, s10, s27
        buffer_load_dword v132, v130, s[60:63], s10 offen
        s_add_u32 s28, s28, 32
        s_cmp_lt_u32 s28, 172
        s_cbranch_scc1 L_m_pf2
        v_lshrrev_b32 v128, 2, v2
        v_and_b32 v129, 3, v2
        v_lshlrev_b32 v130, 10, v128
        v_lshl_add_u32 v130, v129, 7, v130
        s_and_b32 s27, s24, 1
        s_lshl_b32 s27, s27, 9
        s_lshl_b32 s10, s25, 14
        s_add_u32 s10, s10, s27
        buffer_load_dword v132, v130, s[12:15], s10 offen
        """)
    stamp(k, 6)
    k("s_branch L_m_g2")
    k("L_m_red:")
    g1_ids(k, 26, 27, 28)
    k(f"""
    s_cmp_ge_u32 s25, 30
    s_cbranch_scc1 L_m_skipred
    s_mul_i32 s29, s26, 3
    s_add_u32 s29, s29, s33
    s_cmp_ge_u32 s29, 44
    s_cbranch_scc1 L_m_skipred
    s_lshl_b32 s10, s27, 4
    s_add_u32 s10, s10, s26
    s_lshl_b32 s10, s10, 2
    s_add_u32 s10, s10, s28
    s_lshl_b32 s10, s10, 9
    s_add_u32 s10, s10, {FP}
    v_and_b32 v15, 3, v2
    v_lshlrev_b32 v15, 7, v15
    s_lshl_b32 s11, s29, 6
    v_lshrrev_b32 v{MG.T+1}, 5, v2
    v_lshlrev_b32 v{MG.T+1}, 3, v{MG.T+1}
    """)
    for q in range(4): k(f"buffer_load_dwordx2 {vr(MG.RF+2*q,2)}, v{MG.T+1}, s[16:19], s11 offen offset:{q*16}")
    flag_poll(k, 15, 10, MG.T, sleep=4)
    stamp(k, 6)
    k(f"""
    s_mul_i32 s10, s27, 15
    s_add_u32 s10, s10, s26
    s_lshl_b32 s10, s10, 2
    s_add_u32 s10, s10, s28
    s_mul_i32 s10, s10, 3
    s_add_u32 s10, s10, s33
    s_lshl_b32 s10, s10, 13
    s_add_u32 s10, s10, {PF}
    s_add_u32 s11, s10, 4096
    """)
    P = MG.FO
    for q in range(8):
        k(f"buffer_load_dwordx4 {vr(P+4*q,4)}, v{MG.vL16}, s[20:23], s{10 if q < 4 else 11} offen offset:{(q&3)*1024} sc1")
    B = A + 16; T = A + 32
    k("s_mov_b32 s6, 0xffff0000")
    for q in range(4):
        for j in range(2):
            k(f"v_lshlrev_b32 v{A+4*q+2*j}, 16, v{MG.RF+2*q+j}")
            k(f"v_and_b32 v{A+4*q+2*j+1}, s6, v{MG.RF+2*q+j}")
    for kq in range(4):
        k(f"s_waitcnt vmcnt({6-2*kq})")
        for j in range(8):
            k(f"v_lshlrev_b32 v{B+2*j}, 16, v{P+8*kq+j}")
            k(f"v_and_b32 v{B+2*j+1}, s6, v{P+8*kq+j}")
        for r in range(16): k(f"v_add_f32 v{A+r}, v{A+r}, v{B+r}")
    c0 = math.sqrt(2/math.pi)
    k(f"s_mov_b32 s10, {f32(-2*LOG2E*c0*0.044715)}")
    k(f"v_mov_b32 v15, {f32(-2*LOG2E*c0)}")
    for r in range(16): k(f"v_mul_f32 v{T+r}, v{A+r}, v{A+r}")
    for r in range(16): k(f"v_fma_f32 v{T+r}, v{T+r}, s10, v15")
    for r in range(16): k(f"v_mul_f32 v{T+r}, v{T+r}, v{A+r}")
    for r in range(16): k(f"v_exp_f32 v{T+r}, v{T+r}")
    for r in range(16): k(f"v_add_f32 v{T+r}, 1.0, v{T+r}")
    for r in range(16): k(f"v_rcp_f32 v{T+r}, v{T+r}")
    for r in range(16): k(f"v_mul_f32 v{A+r}, v{A+r}, v{T+r}")
    for j in range(8): k(f"v_cvt_pk_bf16_f32 v{B+j}, v{A+2*j}, v{A+2*j+1}")
    k(f"""
    s_lshl_b32 s4, s27, 1
    s_lshr_b32 s5, s28, 1
    s_add_u32 s4, s4, s5           ; dt
    s_and_b32 s5, s28, 1           ; di
    s_mul_i32 s10, s4, {UKS*2048}
    s_lshl_b32 s31, s29, 12
    s_add_u32 s10, s10, s31
    s_lshl_b32 s31, s5, 10
    s_add_u32 s10, s10, s31
    s_add_u32 s10, s10, {UF}
    buffer_store_dwordx4 {vr(B,4)}, v{MG.vL16}, s[20:23], s10 offen sc1
    buffer_store_dwordx4 {vr(B+4,4)}, v{MG.vL16}, s[20:23], s10 offen offset:2048 sc1
    s_lshl_b32 s10, s4, 14
    s_lshl_b32 s31, s29, 8
    s_add_u32 s10, s10, s31
    s_lshl_b32 s31, s5, 7
    s_add_u32 s10, s10, s31
    s_add_u32 s10, s10, {FU}
    """)
    flag_store(k, 10, MG.T+1, MG.T+2)
    k("s_branch L_m_g2")
    k("L_m_skipred:")
    stamp(k, 6)
    k("L_m_g2:")
    final_ids(k)
    srd(k, 16, P_B2, 2048*2)
    k(f"""
    s_mul_i32 s28, s33, {22*16*4096}
    s_lshl_b32 s31, s26, 7
    s_add_u32 s28, s28, s31
    s_mul_i32 s29, s27, {UKS*2048}
    s_mul_i32 s31, s33, {22*2048}
    s_add_u32 s29, s29, s31
    s_add_u32 s29, s29, {UF}
    s_lshl_b32 s10, s9, 6
    s_lshl_b32 s31, s8, 10
    v_xor_b32 v{MG.vL0}, s31, v{MG.vL16}
    v_xor_b32 v{MG.vL1}, 1024, v{MG.vL0}
    """)
    dma_addr(k, MG.vDma, 4096, MG.T, MG.T+1)
    mg_tr_setup(k, True, 10)
    k(f"""
    v_min_u32 v15, 21, v2
    v_lshlrev_b32 v15, 7, v15
    s_lshl_b32 s10, s27, 14
    s_mul_i32 s31, s33, {22*128}
    s_add_u32 s10, s10, s31
    s_add_u32 s10, s10, {FU}
    """)
    flag_poll(k, 15, 10, MG.T, sleep=8)
    stamp(k, 7)
    if "t" not in OPT:
        k(f"""
        s_and_b32 s31, s26, 7
        s_mul_i32 s31, s31, {44*128}
        s_add_u32 s31, s31, s29
        v_min_u32 v{MG.T+1}, 43, v2
        v_lshlrev_b32 v{MG.T+1}, 7, v{MG.T+1}
        buffer_load_dword v{MG.T+3}, v{MG.T+1}, s[20:23], s31 offen sc1
        """)
    Seg(22, 60, 28, 4096, 29, False, True, fo_flags=" sc1").run(k)
    stamp(k, 8)
    k(f"""
    v_and_b32 v15, 31, v2
    s_lshl_b32 s10, s26, 6
    s_lshl_b32 s31, s9, 5
    s_add_u32 s10, s10, s31
    v_add_u32 v15, s10, v15
    v_lshlrev_b32 v{MG.T+1}, 2, v15
    v_lshlrev_b32 v15, 1, v15
    s_mov_b32 s10, {GF}
    buffer_load_dword v{MG.RF}, v{MG.T+1}, s[20:23], s10 offen sc1
    buffer_load_ushort v{MG.RF+1}, v15, s[16:19], 0 offen
    """)
    mg_reduce(k)
    G = MG.RF; BA = A + 16; FOb = A + 32; FWb = A + 48
    srd(k, 12, P_OUT, 2048*512*2)
    k(f"""
    s_waitcnt vmcnt(0)
    v_sub_f32 v{G+2}, 1.0, v{G}
    v_lshlrev_b32 v{G+1}, 16, v{G+1}
    """)
    for r in range(16): k(f"v_add_f32 v{A+r}, v{A+r}, v{G+1}")
    for r in range(16): k(f"v_mul_f32 v{A+r}, v{A+r}, v{G+2}")
    for r in range(16): k(f"v_mov_b32 v{BA+r}, 0")
    tr_addr(k, 5, True, MG.T, MG.T+1)
    k(f"""
    s_lshl_b32 s31, s8, 6
    v_xor_b32 v5, s31, v5
    v_add_u32 v5, 16384, v5
    s_lshl_b32 s31, s9, 10
    v_add_u32 v4, s31, v{MG.vL16}
    v_and_b32 v10, 31, v2
    v_lshlrev_b32 v10, 10, v10
    v_lshrrev_b32 v11, 5, v2
    v_lshl_add_u32 v10, v11, 4, v10
    s_lshl_b32 s28, s26, 16
    s_lshl_b32 s31, s9, 15
    s_add_u32 s28, s28, s31
    s_lshl_b32 s31, s27, 7
    s_add_u32 s28, s28, s31
    s_lshl_b32 s31, s8, 6
    s_add_u32 s28, s28, s31
    s_mov_b32 s29, 0
    v_add_u32 v6, {C_ST}, v{MG.vZ}
    s_setprio 0
    """)
    stamp(k, 9)
    lds_wait(k, MG.vZ, C_GO2, MG.T, 1, sleep=2)
    k("s_setprio 3")
    stamp(k, 10)
    k("L_f_loop:")
    lds_wait(k, 6, 0, MG.T, 4, sleep=0)
    def rd(ks):
        b = ks & 3
        return [f"ds_read_b128 {vr(FOb+4*b,4)}, v4 offset:{ks*2048}",
                f"ds_read_b64_tr_b16 {vr(FWb+4*b,2)}, v5 offset:{ks*2048}",
                f"ds_read_b64_tr_b16 {vr(FWb+4*b+2,2)}, v5 offset:{ks*2048+1024}"]
    for ks in range(4): k.emit(rd(ks))
    for ks in range(8):
        b = ks & 3
        rem = min(ks+4, 8) - (ks+1)
        k(f"s_waitcnt lgkmcnt({rem*3})")
        k(f"v_mfma_f32_32x32x16_bf16 {vr(BA,16)}, {vr(FWb+4*b,4)}, {vr(FOb+4*b,4)}, {vr(BA,16)}")
        if ks + 4 < 8: k.emit(rd(ks+4))
    k(f"""
    v_add_u32 v4, 32768, v4
    v_add_u32 v5, 32768, v5
    v_add_u32 v6, 4, v6
    s_add_u32 s29, s29, 1
    s_cmp_lt_u32 s29, 4
    s_cbranch_scc1 L_f_loop
    s_nop 12
    """)
    stamp(k, 11)
    for r in range(16): k(f"v_fmac_f32 v{A+r}, v{BA+r}, v{G}")
    Bq = FOb
    for j in range(8): k(f"v_cvt_pk_bf16_f32 v{Bq+j}, v{A+2*j}, v{A+2*j+1}")
    k(f"""
    s_nop 1
    v_permlane32_swap_b32 v{Bq}, v{Bq+2}
    v_permlane32_swap_b32 v{Bq+1}, v{Bq+3}
    v_permlane32_swap_b32 v{Bq+4}, v{Bq+6}
    v_permlane32_swap_b32 v{Bq+5}, v{Bq+7}
    s_nop 1
    buffer_store_dwordx4 {vr(Bq,4)}, v10, s[12:15], s28 offen
    buffer_store_dwordx4 {vr(Bq+4,4)}, v10, s[12:15], s28 offen offset:32
    """)
    stamp_flush(k, 12)
    k(f"{end}:")
    k("s_endpgm")
    return k

if __name__ == "__main__":
    kk = fused()
    out = sys.argv[1] if len(sys.argv) > 1 else "gated_mix__softmax_full_mha__mixer_token_mlp__prompt.s"
    open(out, "w").write(build([kk]))
```

```python
import sys, math, struct, os
from asmlib import *

NAME = "gated_mix__softmax_full_mha__mixer_token_mlp__prompt_kernel"
QF = 0x000000
KV = 0x200000
HF = 0x600000
UF = 0x800000
GF = 0x980000
F1 = 0xC00000
FH = 0xD00000
FU = 0xC30000
FO_ = 0xC80000
OF = 0xA00000
PF = 0x1000000
FP = 0xCC0000
TS = 0xE00000
WS_BYTES = 0x10000000
UKS = 88
def f32(x): return f"{struct.unpack('<I', struct.pack('<f', x))[0]:#010x}"
LOG2E = 1.4426950408889634
STAMP = bool(os.environ.get("STAMP"))
OPT = os.environ.get("OPT", "")
SPIN = 0x40000
P_X, P_WQKV, P_WO, P_W1, P_B1, P_W2, P_B2, P_GW, P_OUT, P_DBG, P_WS = 36, 38, 40, 44, 46, 48, 50, 52, 54, 56, 58
NONCE = 35
KVP = 2064
MRING = 64*KVP
RB = 16896
QST = RB + 131072
CNT = MRING + 4*6144
C_ALL, C_M, C_GO, C_NONCE, C_DONE, C_GO2, C_PUB, C_ST = 64, 68, 72, 76, 80, 84, 88, 96
C_PROG, C_FREE, C_H, C_C0, C_QRD, C_STD = 112, 128, 144, 148, 152, 156

def stamp(k, i):
    if not STAMP: return
    k(f"""
    s_memrealtime s[92:93]
    s_memtime s[94:95]
    s_waitcnt lgkmcnt(0)
    s_mov_b32 s{64+2*i}, s92
    s_mov_b32 s{65+2*i}, s94
    """)
def stamp_flush(k, n):
    if not STAMP: return
    k("s_waitcnt vmcnt(0)")
    stamp(k, n)
    k(f"""
    s_lshl_b32 s92, s2, 11
    s_lshl_b32 s93, s3, 7
    s_add_u32 s92, s92, s93
    s_add_u32 s92, s92, {TS}
    s_mov_b64 exec, 1
    v_mov_b32 v1, 0
    """)
    for i in range(2*n+2):
        k(f"v_mov_b32 v0, s{64+i}")
        k(f"buffer_store_dword v0, v1, s[20:23], s92 offen offset:{4*i}")

def lds_wait(k, vaddr, off, vt, target, sleep=1, st=4):
    l = k.lab("lw"); d = k.lab("lwd")
    k(f"""
{l}:
    ds_read_b32 v{vt}, v{vaddr} offset:{off}
    s_waitcnt lgkmcnt(0)
    v_readfirstlane_b32 s{st}, v{vt}
    s_cmp_ge_u32 s{st}, {target}
    s_cbranch_scc1 {d}
    s_sleep {sleep}
    s_branch {l}
{d}:
    """)
def lds_add(k, vaddr, vone, offs):
    k("s_mov_b64 exec, 1")
    for o in offs: k(f"ds_add_u32 v{vaddr}, v{vone} offset:{o}")
    k("s_mov_b64 exec, -1")
def flag_poll(k, voff, soff, vt, sleep=2, sc=5):
    l = k.lab("fp"); d = k.lab("fpd")
    k(f"""
    s_mov_b32 s{sc}, 0
{l}:
    buffer_load_dword v{vt}, v{voff}, s[20:23], s{soff} offen sc1
    s_add_u32 s{sc}, s{sc}, 1
    s_waitcnt vmcnt(0)
    v_cmp_ne_u32 vcc, s{NONCE}, v{vt}
    s_and_b64 exec, exec, vcc
    s_cbranch_scc0 {d}
    s_sleep {sleep}
    s_cmp_lt_u32 s{sc}, {SPIN}
    s_cbranch_scc1 {l}
{d}:
    s_mov_b64 exec, -1
    """)
def flag_store(k, soff, va, vb):
    k(f"""
    v_mov_b32 v{va}, 0
    v_mov_b32 v{vb}, s{NONCE}
    s_waitcnt vmcnt(0)
    s_mov_b64 exec, 1
    buffer_store_dword v{vb}, v{va}, s[20:23], s{soff} offen sc1
    s_mov_b64 exec, -1
    """)
def get_nonce(k, vz, vt):
    k(f"""
    ds_read_b32 v{vt}, v{vz} offset:{C_NONCE}
    s_waitcnt lgkmcnt(0)
    v_readfirstlane_b32 s{NONCE}, v{vt}
    """)

class MG:
    ACC = 16; FO = 80; RF = 112
    vL0 = 3; vL1 = 4; vDma = 5; vTr = 6
    vZ = 8; vOne = 9; vRd = 10; vWr = 13; vL16 = 14
    T = 128
def tr_addr(k, dst, sigma, a, c):
    k(f"""
    v_bfe_u32 v{a}, v2, 2, 2
    v_lshrrev_b32 v{dst}, 5, v2
    v_lshl_add_u32 v{dst}, v{dst}, {2 if sigma else 3}, v{a}
    v_lshlrev_b32 v{dst}, 7, v{dst}
    v_bfe_u32 v{c}, v2, 4, 1
    v_lshl_add_u32 v{dst}, v{c}, 5, v{dst}
    v_and_b32 v{c}, 3, v2
    v_lshl_add_u32 v{dst}, v{c}, 3, v{dst}
    v_lshrrev_b32 v{c}, 1, v{a}
    v_lshl_add_u32 v{dst}, v{c}, 6, v{dst}
    """)
def mg_tr_setup(k, sigma, gx):
    a, b, c = MG.T, MG.T+1, MG.T+2
    tr_addr(k, b, sigma, a, c)
    k(f"""
    v_xor_b32 v{b}, s{gx}, v{b}
    v_add_u32 v{MG.vTr}, s30, v{b}
    v_xor_b32 v{b}, 64, v{b}
    v_add_u32 v{MG.vTr+1}, s30, v{b}
    """)
def dma_addr(k, vdst, pitch, a, b):
    k(f"""
    v_lshrrev_b32 v{a}, 3, v2
    v_mul_u32_u24 v{vdst}, {pitch}, v{a}
    v_bfe_u32 v{a}, v2, 4, 1
    v_lshlrev_b32 v{a}, 2, v{a}
    v_and_b32 v{b}, 7, v2
    v_xor_b32 v{a}, v{a}, v{b}
    v_lshl_add_u32 v{vdst}, v{a}, 4, v{vdst}
    """)
class Seg:
    def __init__(self, nsteps, ring_srd, s_ring, pitch, s_fo, ring_is_A, sigma, fo_flags=""):
        self.__dict__.update(locals())
    def ring(self, j):
        sl = j % 3
        return ([f"s_add_u32 m0, s30, {sl*2048}",
                 f"s_add_u32 s31, s{self.s_ring}, {8*self.pitch}",
                 f"buffer_load_dwordx4 v{MG.vDma}, s[{self.ring_srd}:{self.ring_srd+3}], s{self.s_ring} offen lds"],
                [f"s_add_u32 m0, s30, {sl*2048+1024}",
                 f"s_add_u32 s{self.s_ring}, s{self.s_ring}, {16*self.pitch}",
                 f"buffer_load_dwordx4 v{MG.vDma}, s[{self.ring_srd}:{self.ring_srd+3}], s31 offen lds"])
    def fo(self, j):
        sl = j % 4
        return [f"buffer_load_dwordx4 {vr(MG.FO+sl*8,4)}, v{MG.vL0}, s[20:23], s{self.s_fo} offen{self.fo_flags}",
                f"buffer_load_dwordx4 {vr(MG.FO+sl*8+4,4)}, v{MG.vL1}, s[20:23], s{self.s_fo} offen{self.fo_flags}",
                f"s_add_u32 s{self.s_fo}, s{self.s_fo}, 2048"]
    def group(self, j):
        r = self.ring(j); return r[0] + r[1] + self.fo(j)
    def trs(self, j):
        sl = j % 3; buf = j & 1
        ustep = 1024 if self.sigma else 512
        return [f"ds_read_b64_tr_b16 {vr(MG.RF+buf*8+g*4+u*2,2)}, v{MG.vTr+g} offset:{sl*2048+u*ustep}" for g in range(2) for u in range(2)]
    def mfmas(self, j):
        sl = j % 4; buf = j & 1
        out = []
        for mi in range(2):
            for ni in range(2):
                a = MG.ACC + (mi*2+ni)*16
                if self.ring_is_A: A = vr(MG.RF+buf*8+mi*4, 4); B = vr(MG.FO+sl*8+ni*4, 4)
                else:              A = vr(MG.FO+sl*8+mi*4, 4); B = vr(MG.RF+buf*8+ni*4, 4)
                out.append(f"v_mfma_f32_32x32x16_bf16 {vr(a,16)}, {A}, {B}, {'0' if j == 0 else vr(a,16)}")
        return out
    def run(self, k):
        n = self.nsteps
        for j in range(3): k.emit(self.group(j))
        k("s_waitcnt vmcnt(10)")
        k.emit(self.trs(0))
        k("s_waitcnt lgkmcnt(0)")
        k.emit(self.group(3))
        for i in range(n):
            last = min(i+3, n-1)
            m = self.mfmas(i)
            if i + 1 < n:
                k(f"s_waitcnt vmcnt({2 + 4*(last-(i+1))})")
                k.emit(self.trs(i+1))
            else:
                k("s_waitcnt vmcnt(0)")
            more = i + 4 < n
            SL = os.environ.get("SL")
            sp = (lambda: k(f"s_sleep {SL}")) if SL else (lambda: None)
            k(m[0])
            if i + 1 < n: k("s_waitcnt lgkmcnt(0)")
            sp()
            k(m[1])
            if more: k.emit(self.ring(i+4)[0])
            sp()
            k(m[2])
            if more: k.emit(self.ring(i+4)[1])
            sp()
            k(m[3])
            if more: k.emit(self.fo(i+4))
            sp()
def mbar(k):
    k("s_waitcnt lgkmcnt(0)")
    lds_add(k, MG.vZ, MG.vOne, [C_M])
    k("s_add_u32 s34, s34, 4")
    l = k.lab("mbar")
    k(f"""
{l}:
    ds_read_b32 v{MG.T}, v{MG.vZ} offset:{C_M}
    s_waitcnt lgkmcnt(0)
    v_readfirstlane_b32 s4, v{MG.T}
    s_cmp_lt_u32 s4, s34
    s_cbranch_scc1 {l}
    """)
def mg_reduce(k):
    A = MG.ACC; T = MG.FO
    k("s_nop 15")
    for h in range(2):
        for r in range(1, 4):
            for q in range(2):
                k(f"ds_write_b128 v{MG.vWr}, {vr(A+r*16+(2*h+q)*4,4)} offset:{(r-1)*2048+q*1024}")
        mbar(k)
        for r in range(1, 4):
            for q in range(2):
                k(f"ds_read_b128 {vr(T+((r-1)*2+q)*4,4)}, v{MG.vRd+r-1} offset:{(r-1)*2048+q*1024}")
        if h == 0: mbar(k)
        else: k("s_waitcnt lgkmcnt(0)")
        for j in range(8):
            k(f"v_add_f32 v{T+j}, v{T+j}, v{T+8+j}")
            k(f"v_add_f32 v{A+8*h+j}, v{A+8*h+j}, v{T+16+j}")
        for j in range(8):
            k(f"v_add_f32 v{A+8*h+j}, v{A+8*h+j}, v{T+j}")


def lds_wait_min4(k, vaddr, off, vt, target, sleep=0, st=4):
    l = k.lab("lm"); d = k.lab("lmd")
    k(f"""
{l}:
    ds_read_b128 {vr(vt,4)}, v{vaddr} offset:{off}
    s_waitcnt lgkmcnt(0)
    v_min3_u32 v{vt}, v{vt}, v{vt+1}, v{vt+2}
    v_min_u32 v{vt}, v{vt}, v{vt+3}
    s_nop 0
    v_readfirstlane_b32 s{st}, v{vt}
    s_cmp_ge_u32 s{st}, {target}
    s_cbranch_scc1 {d}
    s_sleep {sleep}
    s_branch {l}
{d}:
    """)
RM = int(os.environ.get("RM", "8"))
def fused():
    k = Kern(NAME, 256, 768, 163840, nvgpr=168, nsgpr=96)
    end = "L_end"
    k(f"""
    s_cmp_ge_u32 s2, 256
    s_cbranch_scc1 {end}
    s_load_dwordx16 s[36:51], s[0:1], 0
    s_load_dwordx8 s[52:59], s[0:1], 64
    v_lshrrev_b32 v1, 6, v0
    v_and_b32 v2, 63, v0
    v_readfirstlane_b32 s3, v1
    s_and_b32 s24, s2, 7
    s_lshr_b32 s25, s2, 3          ; i
    s_cmp_lg_u32 s3, 3
    s_cbranch_scc1 L_nopf
    s_getpc_b64 s[4:5]
L_pc:
    v_lshlrev_b32 v136, 7, v2
    global_load_dword v1, v136, s[4:5]
    v_add_u32 v136, 8192, v136
    v_min_u32 v136, {end}-L_pc-4, v136
    global_load_dword v1, v136, s[4:5]
    v_add_u32 v136, 8192, v136
    v_min_u32 v136, {end}-L_pc-4, v136
    global_load_dword v1, v136, s[4:5]
L_nopf:
    """)
    stamp(k, 0)
    def g1_ids(k, sfb, sdq, skq):
        k(f"""
        s_and_b32 s{sfb}, s24, 1
        s_mul_i32 s{sfb}, s{sfb}, 30
        s_add_u32 s{sfb}, s{sfb}, s25
        s_and_b32 s{sdq}, s{sfb}, 3
        s_lshr_b32 s{sfb}, s{sfb}, 2
        s_lshr_b32 s{skq}, s24, 1
        """)
    k(f"""
    s_lshr_b32 s26, s24, 1
    s_lshl_b32 s26, s26, 3
    s_and_b32 s6, s25, 7
    s_add_u32 s26, s26, s6         ; tb 0..31
    s_and_b32 s27, s24, 1
    s_lshl_b32 s27, s27, 2
    s_lshr_b32 s7, s25, 3
    s_add_u32 s27, s27, s7         ; hq 0..7
    s_cmp_lt_u32 s3, 4
    s_cbranch_scc1 L_comp
    s_cmp_lt_u32 s3, 8
    s_cbranch_scc1 L_loader
    """)
    A = MG.ACC
    XR = 16; GR = 24; XF = 32; GW = 48; RS = 56; PK = 64
    k(f"""
L_m_start:
    {"s_endpgm" if "Q" in OPT else ""}
    s_sub_u32 s33, s3, 8           ; mw
    s_lshl_b32 s28, s26, 6
    s_lshl_b32 s29, s27, 3
    s_add_u32 s28, s28, s29
    s_lshl_b32 s29, s33, 1
    s_add_u32 s29, s29, s28
    s_lshl_b32 s31, s29, 10
    v_lshlrev_b32 v{MG.vL16}, 4, v2
    v_mov_b32 v{MG.vZ}, {CNT}
    v_mov_b32 v{MG.vOne}, 1
    v_mov_b32 v15, 0
    s_waitcnt lgkmcnt(0)
    """)
    srd(k, 12, P_X, 2048*512*2)
    srd(k, 16, P_GW, 1024)
    k(f"""
    buffer_load_dwordx4 {vr(XR,4)}, v{MG.vL16}, s[12:15], s31 offen
    buffer_load_dwordx4 {vr(XR+4,4)}, v{MG.vL16}, s[12:15], s31 offen offset:1024
    buffer_load_dwordx4 {vr(GR,4)}, v{MG.vL16}, s[16:19], 0 offen
    """)
    srd(k, 20, P_WS, WS_BYTES)
    srd(k, 60, P_DBG, 256)
    srd(k, 12, P_W1, 2048*1376*2)
    k(f"""
    s_cmp_lg_u32 s33, 1
    s_cbranch_scc1 L_m_i1
    s_cmp_lg_u32 s2, 0
    s_cbranch_scc1 L_m_i1
    s_memrealtime s[4:5]
    s_waitcnt lgkmcnt(0)
    s_or_b32 s4, s4, 1
    v_mov_b32 v138, s4
    s_mov_b64 exec, 1
    buffer_store_dword v138, v15, s[60:63], 0 offen sc1
    s_mov_b64 exec, -1
L_m_i1:
    s_cmp_lg_u32 s33, 0
    s_cbranch_scc1 L_m_i2
    v_lshlrev_b32 v136, 2, v2
    v_add_u32 v136, {CNT}, v136
    v_cmp_eq_u32 vcc, 8, v2
    v_mov_b32 v138, 4
    s_nop 0
    v_cndmask_b32 v138, 0, v138, vcc
    ds_write_b32 v136, v138
    v_and_b32 v136, 7, v2
    v_mul_u32_u24 v136, {KVP}, v136
    v_mov_b32 v140, 0x3f803f80
    v_mov_b32 v141, 0x3f803f80
    v_mov_b32 v142, 0x3f803f80
    v_mov_b32 v143, 0x3f803f80
    ds_write_b128 v136, v[140:143] offset:2048
L_m_i2:
    s_mov_b32 s10, 0xffff0000
    s_mov_b32 s34, 0
    s_waitcnt lgkmcnt(0)
    s_barrier
    s_cmp_eq_u32 s2, 0
    s_cbranch_scc1 L_m_i2b
    s_waitcnt vmcnt(0)
L_m_i2b:
    s_cmp_eq_u32 s33, 1
    s_cbranch_scc1 L_m_i2c
    s_waitcnt vmcnt(0)
L_m_i2c:
    s_waitcnt vmcnt(1)
    """)
    for j in range(4):
        k(f"v_lshlrev_b32 v{GW+2*j}, 16, v{GR+j}")
        k(f"v_and_b32 v{GW+2*j+1}, s10, v{GR+j}")
    for t in range(2):
        for j in range(4):
            k(f"v_lshlrev_b32 v{XF+8*t+2*j}, 16, v{XR+4*t+j}")
            k(f"v_and_b32 v{XF+8*t+2*j+1}, s10, v{XR+4*t+j}")
    for t in range(2):
        k(f"v_add_f32 v{RS+t}, v{XF+8*t}, v{XF+8*t+1}")
        k(f"v_mul_f32 v{RS+2+t}, v{XF+8*t}, v{GW}")
    for i in range(1, 8):
        for t in range(2):
            if i >= 2: k(f"v_add_f32 v{RS+t}, v{RS+t}, v{XF+8*t+i}")
            k(f"v_fmac_f32 v{RS+2+t}, v{XF+8*t+i}, v{GW+i}")
    def wave_reduce(regs):
        pad = max(0, 3 - len(regs))
        steps = [f"{c} row_mask:0xf bank_mask:0xf bound_ctrl:0" for c in ("row_shr:1", "row_shr:2", "row_shr:4", "row_shr:8")]
        steps += ["row_bcast:15 row_mask:0xa bank_mask:0xf", "row_bcast:31 row_mask:0xc bank_mask:0xf"]
        for c in steps:
            for r in regs: k(f"v_add_f32_dpp v{r}, v{r}, v{r} {c}")
            if pad: k(f"s_nop {pad-1}")
    k("buffer_load_dword v136, v15, s[60:63], 0 offen sc1")
    k("s_nop 1")
    wave_reduce([RS, RS+1, RS+2, RS+3])
    k(f"s_mov_b32 s10, {f32(1.0/512)}")
    k(f"s_mov_b32 s11, {f32(-LOG2E)}")
    for t in range(2): k(f"v_mul_f32 v{RS+t}, s10, v{RS+t}")
    for t in range(2): k(f"v_mul_f32 v{RS+2+t}, s11, v{RS+2+t}")
    for t in range(2): k(f"v_readlane_b32 s{4+t}, v{RS+t}, 63")
    for t in range(2): k(f"v_exp_f32 v{RS+2+t}, v{RS+2+t}")
    for t in range(2):
        for i in range(8): k(f"v_subrev_f32 v{XF+8*t+i}, s{4+t}, v{XF+8*t+i}")
    for t in range(2): k(f"v_add_f32 v{RS+2+t}, 1.0, v{RS+2+t}")
    for t in range(2): k(f"v_rcp_f32 v{RS+2+t}, v{RS+2+t}")
    for t in range(2): k(f"v_mul_f32 v{RS+t}, v{XF+8*t}, v{XF+8*t}")
    for i in range(1, 8):
        for t in range(2): k(f"v_fmac_f32 v{RS+t}, v{XF+8*t+i}, v{XF+8*t+i}")
    k("s_nop 1")
    wave_reduce([RS, RS+1])
    k(f"v_mov_b32 v{PK}, {f32(1e-5)}")
    for t in range(2): k(f"v_fma_f32 v{RS+t}, v{RS+t}, s10, v{PK}")
    for t in range(2): k(f"v_rsq_f32 v{RS+t}, v{RS+t}")
    k("s_nop 0")
    for t in range(2): k(f"v_readlane_b32 s{4+t}, v{RS+t}, 63")
    k(f"""
    s_lshl_b32 s31, s29, 2
    s_add_u32 s31, s31, {GF}
    s_mov_b32 exec_lo, 0
    s_mov_b32 exec_hi, 0x80000000
    buffer_store_dwordx2 {vr(RS+2,2)}, v15, s[20:23], s31 offen sc1
    s_mov_b64 exec, -1
    s_lshl_b32 s31, s33, 11
    s_add_u32 s31, s31, {QST}
    v_lshlrev_b32 v{MG.T}, 5, v2
    v_add_u32 v{MG.T}, s31, v{MG.T}
    """)
    for t in range(2):
        for i in range(8): k(f"v_mul_f32 v{XF+8*t+i}, s{4+t}, v{XF+8*t+i}")
    for i in range(8): k(f"v_cvt_pk_bf16_f32 v{PK+i}, v{XF+i}, v{XF+8+i}")
    k(f"""
    ds_write_b128 v{MG.T}, {vr(PK,4)}
    ds_write_b128 v{MG.T}, {vr(PK+4,4)} offset:16
    s_lshl_b32 s31, s33, 9
    s_add_u32 s31, s31, {QST}
    v_lshlrev_b32 v{MG.T+1}, 2, v2
    v_add_u32 v{MG.T+1}, s31, v{MG.T+1}
    v_lshrrev_b32 v{MG.T}, 5, v2
    v_lshlrev_b32 v{MG.T}, 10, v{MG.T}
    v_and_b32 v{MG.T+2}, 31, v2
    v_lshl_add_u32 v{MG.T}, v{MG.T+2}, 4, v{MG.T}
    s_lshr_b32 s31, s28, 4
    s_lshl_b32 s31, s31, 11
    s_bfe_u32 s4, s28, 0x10003
    s_lshl_b32 s4, s4, 9
    s_add_u32 s31, s31, s4
    s_lshl_b32 s4, s33, 19
    s_add_u32 s31, s31, s4
    s_add_u32 s31, s31, {HF}
    s_add_u32 s6, s31, 262144
    """)
    TA, TB = MG.T+4, MG.T+5
    k(f"v_mov_b32 v{TA}, v{MG.T}")
    stamp(k, 1)
    mbar(k)
    k(f"""
    ds_read2st64_b32 {vr(XR,2)}, v{MG.T+1} offset0:0 offset1:8
    ds_read2st64_b32 {vr(XR+2,2)}, v{MG.T+1} offset0:16 offset1:24
    ds_read2st64_b32 {vr(XR+4,2)}, v{MG.T+1} offset0:1 offset1:9
    ds_read2st64_b32 {vr(XR+6,2)}, v{MG.T+1} offset0:17 offset1:25
    s_waitcnt lgkmcnt(0)
    buffer_store_dwordx4 {vr(XR,4)}, v{TA}, s[20:23], s31 offen sc1
    buffer_store_dwordx4 {vr(XR+4,4)}, v{TA}, s[20:23], s6 offen sc1
    s_mov_b32 s5, 0
    s_waitcnt vmcnt(3)
L_m_tag:
    v_readfirstlane_b32 s{NONCE}, v136
    s_cmp_lg_u32 s{NONCE}, 0
    s_cbranch_scc1 L_m_tagok
    buffer_load_dword v136, v15, s[60:63], 0 offen sc1
    s_add_u32 s5, s5, 1
    s_cmp_lt_u32 s5, {SPIN}
    s_waitcnt vmcnt(0)
    s_cbranch_scc1 L_m_tag
    v_mov_b32 v136, 1
    s_mov_b32 s{NONCE}, 1
L_m_tagok:
    ds_write_b32 v{MG.vZ}, v136 offset:{C_NONCE}
    s_waitcnt vmcnt(0)
    """)
    mbar(k)
    stamp(k, 2)
    k(f"""
    s_cmp_lg_u32 s33, 1
    s_cbranch_scc1 L_m_i4
    s_lshl_b32 s31, s28, 4
    s_add_u32 s31, s31, {FH}
    """)
    flag_store(k, 31, MG.T, MG.T+1)
    k("L_m_i4:")
    k("s_branch L_m_mid")
    k(f"""
L_loader:
    s_sub_u32 s33, s3, 4           ; lw
    s_lshl_b32 s28, s26, 16
    s_lshl_b32 s29, s33, 14
    s_add_u32 s28, s28, s29
    s_mul_i32 s29, s33, {16*3072}
    s_lshl_b32 s30, s27, 7
    s_add_u32 s29, s29, s30        ; w off
    v_lshrrev_b32 v3, 3, v2
    v_lshlrev_b32 v3, 10, v3
    v_lshrrev_b32 v4, 4, v2
    v_and_b32 v5, 7, v2
    v_xor_b32 v5, v5, v4
    v_lshl_add_u32 v3, v5, 4, v3   ; vXe
    v_xor_b32 v6, 64, v3
    v_add_u32 v6, 8192, v6
    """)
    dma_addr(k, 7, 3072, 4, 5)
    k(f"""
    v_add_u32 v8, {8*3072}, v7
    s_lshl_b32 s8, s7, 1
    s_add_u32 s8, s8, s6
    s_add_u32 s31, s7, s6
    s_cmp_lt_u32 {RM}, 8
    s_cselect_b32 s8, s31, s8
    s_and_b32 s31, s8, {RM-1}
    s_mov_b32 s8, 0
    s_lshl_b32 s10, s31, 7
    s_add_u32 s10, s10, s28
    s_mul_i32 s11, s31, {64*3072}
    s_add_u32 s11, s11, s29
    s_waitcnt lgkmcnt(0)
    """)
    srd(k, 12, P_X, 2048*512*2)
    srd(k, 16, P_WQKV, 512*1536*2)
    k("s_barrier")
    LR = 32
    def qload(st, q):
        i, ty = q >> 2, (q & 3) - 1
        d = vr(LR + st*32 + q*4, 4)
        if ty < 0: return f"buffer_load_dwordx4 {d}, v{6 if i else 3}, s[12:15], s10 offen"
        return f"buffer_load_dwordx4 {d}, v{8 if i else 7}, s[16:19], s11 offen offset:{ty*1024}"
    def qwrite(st, q):
        i, ty = q >> 2, (q & 3) - 1
        return f"ds_write_b128 v9, {vr(LR + st*32 + q*4, 4)} offset:{st*32768 + (ty+1)*8192 + i*1024}"
    def qnext():
        k(f"""
        s_add_u32 s8, s8, 1
        s_xor_b32 s11, s8, s31
        s_lshl_b32 s10, s11, 7
        s_add_u32 s10, s10, s28
        s_mul_i32 s11, s11, {64*3072}
        s_add_u32 s11, s11, s29
        """)
    for st in range(2):
        for q in range(8): k(qload(st, q))
        qnext()
    k(f"""
    s_lshl_b32 s4, s33, 2
    s_add_u32 s4, s4, {CNT + C_PROG}
    v_mov_b32 v11, s4              ; PROG[lw]
    v_mov_b32 v12, {CNT}
    v_mov_b32 v13, 0
    s_lshl_b32 s4, s33, 11
    s_add_u32 s4, s4, {RB}
    v_lshlrev_b32 v9, 4, v2
    v_add_u32 v9, s4, v9
    s_mov_b32 s9, 0                ; stage
    s_mov_b32 s34, 65536
    s_lshr_b32 s4, s24, 1
    s_lshl_b32 s4, s4, 7
    s_lshl_b32 s5, s25, 2
    s_add_u32 s4, s4, s5
    s_add_u32 s4, s4, s33
    s_mul_i32 s30, s4, {4*2752}
    s_and_b32 s5, s24, 1
    s_mul_i32 s5, s5, 1344
    s_add_u32 s30, s30, s5
    v_lshrrev_b32 v14, 4, v2
    v_mul_u32_u24 v14, 2752, v14
    v_and_b32 v15, 15, v2
    v_lshlrev_b32 v15, 7, v15
    v_min_u32 v15, 1532, v15
    v_add_u32 v14, v14, v15
    """)
    srd(k, 60, P_W1, 2048*1376*2)
    k("L_ld:")
    def sig():
        k(f"""
        v_add_u32 v13, 1, v13
        s_waitcnt lgkmcnt(0)
        s_mov_b64 exec, 1
        ds_write_b32 v11, v13
        s_mov_b64 exec, -1
        """)
    for st in range(2):
        nf = k.lab("nf");
        k(f"""
        s_cmp_lt_u32 s9, 4
        s_cbranch_scc1 {nf}
        s_sub_u32 s5, s9, 3
        """)
        lds_wait_min4(k, 12, C_FREE, 16, "s5", sleep=1)
        k(f"{nf}:")
        if st == 0:
            k("s_cmp_ge_u32 s9, 6")
            k("s_cbranch_scc1 L_ld_tail")
        for q in range(8):
            k(f"s_waitcnt vmcnt(15)")
            k(qwrite(st, q))
            k(qload(st, q))
        qnext()
        sig()
        TSG = int(os.environ.get("TSG", "3"))
        if "p" not in OPT and st == (TSG & 1):
            nt = k.lab("nt")
            k(f"""
            s_cmp_lg_u32 s9, {TSG}
            s_cbranch_scc1 {nt}
            buffer_load_dword v15, v14, s[60:63], s30 offen
{nt}:
            """)
        k("s_add_u32 s9, s9, 1")
    k(f"""
    v_add_u32 v9, s34, v9
    s_sub_u32 s34, 0, s34
    s_branch L_ld
L_ld_tail:
    """)
    for q in range(8):
        k(f"s_waitcnt vmcnt({15-q})")
        k(qwrite(0, q))
    sig()
    lds_wait_min4(k, 12, C_FREE, 16, 4, sleep=1)
    for q in range(8):
        k(f"s_waitcnt vmcnt({7-q})")
        k(qwrite(1, q))
    sig()
    srd(k, 20, P_WS, WS_BYTES)
    k(f"""
    s_mov_b32 s6, 8
    s_cmp_ge_u32 s25, 30
    s_cbranch_scc1 L_attn
    """)
    srd(k, 12, P_W1, 2048*1376*2)
    g1_ids(k, 4, 5, 6)
    k(f"""
    s_lshl_b32 s29, s6, 5
    s_add_u32 s29, s29, s33
    s_mul_i32 s29, s29, {16*2752}
    s_mul_i32 s7, s4, 192
    s_add_u32 s29, s29, s7         ; w1 src
    s_lshl_b32 s8, s5, 1
    s_add_u32 s8, s8, s4
    s_and_b32 s8, s8, 7            ; rotation
    s_mul_i32 s7, s33, 3072
    s_add_u32 s7, s7, {RB}
    """)
    for i in range(3):
        k(f"""
        v_add_u32 v8, {64*i}, v2
        v_mul_u32_u24 v9, 43691, v8
        v_lshrrev_b32 v9, 19, v9       ; row = p/12
        v_mul_u32_u24 v10, 12, v9
        v_sub_u32 v8, v8, v10
        v_mul_u32_u24 v9, 2752, v9
        v_lshl_add_u32 v{4+i}, v8, 4, v9
        """)
    if "s" in OPT: lds_wait(k, 12, C_STD, 16, 4, sleep=1)
    for j in range(8):
        if j % 2 == 0 and "s" not in OPT: lds_wait_min4(k, 12, C_FREE, 16, 5 + j//2, sleep=1)
        k(f"""
        s_mul_i32 s11, s8, {64*2752}
        s_add_u32 s11, s11, s29
        s_add_u32 s8, s8, 1
        s_and_b32 s8, s8, 7
        """)
        for i in range(3):
            k(f"s_add_u32 m0, s7, {j*16384 + i*1024}")
            k("s_nop 0")
            k(f"buffer_load_dwordx4 v{4+i}, s[12:15], s11 offen lds")
        if j >= 3:
            k("s_waitcnt vmcnt(9)")
            sig()
    for j in range(3):
        k(f"s_waitcnt vmcnt({6-3*j})")
        sig()
    k("s_mov_b32 s6, 9")
    k("s_branch L_attn")
    vXa = 8; vWa = 12; vH = 13; vW1 = 14
    ACC = 32; FX = 80; FW = 88; SD = 112
    k(f"""
L_comp:
    {"s_endpgm" if ("Q" in OPT and "C" not in OPT) else ""}
    {"" if "C" in OPT else "s_barrier"}
    s_and_b32 s32, s3, 1           ; tg
    s_lshr_b32 s33, s3, 1          ; hp
    v_and_b32 v19, 31, v2
    v_lshrrev_b32 v15, 5, v2
    v_lshrrev_b32 v16, 1, v19
    v_and_b32 v16, 7, v16
    s_lshl_b32 s8, s32, 12
    s_add_u32 s8, s8, {RB}
    v_lshl_add_u32 v17, v19, 7, s8
    """)
    for ks in range(4):
        k(f"""
        v_add_u32 v18, {2*ks}, v15
        v_xor_b32 v18, v18, v16
        v_lshl_add_u32 v{vXa+ks}, v18, 4, v17
        """)
    tr_addr(k, vWa, False, 16, 17)
    k(f"""
    s_lshl_b32 s8, s33, 6
    v_xor_b32 v{vWa}, s8, v{vWa}
    v_add_u32 v{vWa}, {RB + 8192}, v{vWa}
    v_lshlrev_b32 v20, 4, v2
    s_lshl_b32 s8, s33, 13
    s_lshl_b32 s9, s32, 10
    s_add_u32 s8, s8, s9
    s_add_u32 s8, s8, {RB}
    v_add_u32 v{vH}, s8, v20
    v_bfe_u32 v16, v2, 2, 2
    v_lshl_add_u32 v16, v15, 3, v16
    v_mul_u32_u24 v{vW1}, 192, v16
    v_bfe_u32 v16, v2, 4, 1
    v_lshl_add_u32 v{vW1}, v16, 5, v{vW1}
    v_and_b32 v16, 3, v2
    v_lshl_add_u32 v{vW1}, v16, 3, v{vW1}
    v_add_u32 v{vW1}, {RB}, v{vW1}
    """)
    for i in range(48): k(f"v_mov_b32 v{ACC+i}, 0")
    k(f"""
    v_and_b32 v21, 0x33, v2
    v_bfe_u32 v23, v2, 2, 1
    v_lshl_or_b32 v21, v23, 3, v21
    v_bfe_u32 v23, v2, 3, 1
    v_lshl_or_b32 v21, v23, 2, v21
    v_lshlrev_b32 v21, 4, v21
    v_bfe_u32 v22, v2, 4, 1
    v_lshlrev_b32 v22, 17, v22
    v_lshl_add_u32 v22, v15, 9, v22
    v_and_b32 v23, 15, v2
    v_lshl_add_u32 v22, v23, 4, v22
    s_lshl_b32 s8, s27, 1
    s_add_u32 s8, s8, s33
    s_lshl_b32 s9, s26, 1
    s_add_u32 s9, s9, s32          ; tile
    s_lshl_b32 s28, s8, 17
    s_lshl_b32 s10, s9, 10
    s_add_u32 s28, s28, s10
    s_lshl_b32 s29, s28, 1
    s_add_u32 s29, s29, {KV}       ; K off
    s_lshl_b32 s30, s8, 13
    s_lshl_b32 s10, s9, 7
    s_add_u32 s30, s30, s10
    s_add_u32 s30, s30, {F1}
    s_mov_b32 s10, {f32(0.25*LOG2E)}
    s_mov_b32 s11, s10
    s_mov_b32 s34, 65536
    v_mov_b32 v24, {CNT}
    s_waitcnt lgkmcnt(0)
    """)
    srd(k, 20, P_WS, WS_BYTES)
    TLB = int(os.environ.get("TLB", "0"))
    if TLB:
        k(f"""
        s_cmp_lg_u32 s3, 2
        s_cbranch_scc1 L_notlb
        v_lshlrev_b32 v16, {TLB}, v2
        """)
        nws = (0x1600000 + (64 << TLB) - 1) // (64 << TLB)
        k(f"v_min_u32 v17, {0x1600000 - 128}, v16")
        for i in range(nws):
            k(f"s_mov_b32 s4, {i * (64 << TLB)}")
            k(f"buffer_load_dword v1, v{17 if nws == 1 else 16}, s[20:23], s4 offen sc1")
        for (p, nb) in ((P_W1, 2048*1376*2), (P_W2, 1376*2048*2), (P_WO, 512*512*2), (P_OUT, 2048*512*2), (P_B1, 2752), (P_B2, 4096)):
            srd(k, 12, p, nb)
            for i in range((nb + (64 << TLB) - 1) // (64 << TLB)):
                k(f"s_mov_b32 s4, {i * (64 << TLB)}")
                k(f"buffer_load_dword v1, v16, s[12:15], s4 offen")
        k("L_notlb:")
    def reads_q(sl, ks, buf):
        out = [f"ds_read_b128 {vr(FX+buf*4,4)}, v{vXa+ks} offset:{sl*32768}"]
        for ty in range(3):
            for u in range(2):
                out.append(f"ds_read_b64_tr_b16 {vr(FW+buf*12+ty*4+u*2,2)}, v{vWa} offset:{sl*32768+ty*8192+ks*2048+u*512}")
        return out
    def reads_g(sl, ks, buf):
        out = [f"ds_read_b128 {vr(FX+buf*4,4)}, v{vH} offset:{sl*32768+ks*2048}"]
        for j in range(3):
            for u in range(2):
                out.append(f"ds_read_b64_tr_b16 {vr(FW+buf*12+j*4+u*2,2)}, v{vW1} offset:{sl*32768+ks*3072+u*768+j*64}")
        return out
    PG = 28
    def boundary(last_label):
        ok = k.lab("ok")
        k(f"""
        v_add_u32 v26, 1, v26
        v_min3_u32 v{PG}, v{PG}, v{PG+1}, v{PG+2}
        s_mov_b64 exec, 1
        ds_write_b32 v27, v26
        s_mov_b64 exec, -1
        v_min_u32 v{PG}, v{PG}, v{PG+3}
        s_add_u32 s8, s8, 1
        """)
        if last_label:
            k("s_cmp_ge_u32 s9, 4")
            k(f"s_cbranch_scc1 {last_label}")
        k(f"""
        v_readfirstlane_b32 s4, v{PG}
        s_add_u32 s5, s8, 1
        s_cmp_ge_u32 s4, s5
        s_cbranch_scc1 {ok}
        """)
        if "C" not in OPT: lds_wait_min4(k, 24, C_PROG, PG, "s5")
        k(".p2align 3")
        k(f"{ok}:")
    def gloop(nm, reads, is_q, aregs, mid=None):
        k("s_mov_b32 s9, 0")
        k(".p2align 3")
        k(f"L_{nm}loop:")
        for sl in range(2):
            for ks in range(4):
                buf = ks & 1
                def mf(ty):
                    x = vr(FX+buf*4, 4)
                    a = ACC + ty*16; w = vr(FW+buf*12+ty*4, 4)
                    if is_q and ty == 2: k(f"v_mfma_f32_32x32x16_bf16 {vr(a,16)}, {x}, {w}, {vr(a,16)}")
                    else:                k(f"v_mfma_f32_32x32x16_bf16 {vr(a,16)}, {w}, {x}, {vr(a,16)}")
                def w(n): k(f"s_waitcnt lgkmcnt({n})"); k("s_nop 0")
                if ks < 3:
                    r = reads(sl, ks+1, buf ^ 1)
                    w(4); mf(0); k.emit(r[0:3])
                    w(5); mf(1); k.emit(r[3:5])
                    w(5); mf(2); k.emit(r[5:7])
                elif sl == 0:
                    r = reads(1, 0, buf ^ 1)
                    w(4); mf(0)
                    k(f"ds_read_b128 {vr(PG,4)}, v24 offset:{C_PROG}")
                    w(3); mf(1)
                    k("s_waitcnt lgkmcnt(0)")
                    boundary(None)
                    k.emit(r[0:3]); mf(2); k.emit(r[3:7])
                    if mid: mid()
                else:
                    r = reads(0, 0, buf ^ 1)
                    w(4); mf(0)
                    k(f"ds_read_b128 {vr(PG,4)}, v24 offset:{C_PROG}")
                    for a in aregs: k(f"v_add_u32 v{a}, s34, v{a}")
                    k(f"""
                    s_sub_u32 s34, 0, s34
                    s_add_u32 s9, s9, 1
                    s_waitcnt lgkmcnt(3)
                    .p2align 3
                    """)
                    mf(1)
                    k("s_waitcnt lgkmcnt(0)")
                    boundary(f"L_{nm}last")
                    k.emit(r[0:3]); mf(2); k.emit(r[3:7])
                    k(f"s_branch L_{nm}loop")
                    k(f"L_{nm}last:")
                    mf(2)
    k(f"""
    s_lshl_b32 s4, s3, 2
    s_add_u32 s4, s4, {CNT + C_FREE}
    v_mov_b32 v27, s4
    v_mov_b32 v26, 0
    s_mov_b32 s8, 0
    """)
    stamp(k, 1)
    if "C" not in OPT: lds_wait_min4(k, 24, C_PROG, PG, 1)
    else: k("s_sleep 90")
    stamp(k, 2)
    k.emit(reads_q(0, 0, 0))
    gloop("q", reads_q, True, range(vXa, vXa+5))
    if "C" in OPT:
        for i in range(3, 12): stamp(k, i)
        stamp_flush(k, 12)
        k("s_endpgm")
    lds_wait(k, 24, C_NONCE, 25, 1, sleep=0, st=NONCE)
    k("s_nop 8")
    stamp(k, 3)
    for ty in (1, 2, 0):
        a = ACC + ty*16
        if ty == 0:
            for r in range(0, 16, 2): k(f"v_pk_mul_f32 {vr(a+r,2)}, {vr(a+r,2)}, s[10:11]")
        for half in range(2):
            d = SD + (ty*2+half)*4
            for j in range(4):
                k(f"v_cvt_pk_bf16_f32 v{d+j}, v{a+half*8+2*j}, v{a+half*8+2*j+1}")
            if ty == 0:
                k(f"s_add_u32 s31, s28, {half*65536}")
                k(f"buffer_store_dwordx4 {vr(d,4)}, v20, s[20:23], s31 offen sc1")
            elif ty == 1:
                k(f"s_add_u32 s31, s29, {half*131072}")
                k(f"buffer_store_dwordx4 {vr(d,4)}, v21, s[20:23], s31 offen sc1")
            else:
                k(f"buffer_store_dwordx4 {vr(d,4)}, v22, s[20:23], s29 offen offset:{1024+half*256} sc1")
    stamp(k, 4)
    for i in range(48): k(f"v_mov_b32 v{ACC+i}, 0")
    def f1pub(vm):
        k(f"""
        v_mov_b32 v25, 0
        v_mov_b32 v19, s{NONCE}
        v_mov_b32 v18, 1
        s_waitcnt vmcnt({vm})
        s_mov_b64 exec, 1
        buffer_store_dword v19, v25, s[20:23], s30 offen sc1
        ds_add_u32 v24, v18 offset:{C_PUB}
        s_mov_b64 exec, -1
        """)
    k("v_mov_b32 v18, 1")
    lds_add(k, 24, 18, [C_STD])
    k(f"""
    s_mov_b32 s7, 0
    ds_read_b32 v{PG}, v24 offset:{C_H}
    """)
    g1_ids(k, 4, 5, 6)
    k(f"""
    s_lshl_b32 s28, s5, 1
    s_add_u32 s28, s28, s33
    s_lshl_b32 s28, s28, 18        ; dt*262144
    s_lshl_b32 s29, s6, 16
    s_add_u32 s28, s28, s29
    s_lshl_b32 s29, s32, 10
    s_add_u32 s28, s28, s29
    s_add_u32 s28, s28, {HF}
    s_lshl_b32 s8, s5, 1
    s_add_u32 s8, s8, s4
    s_and_b32 s8, s8, 7            ; rotation
    v_add_u32 v21, 4096, v20
    s_waitcnt lgkmcnt(0)
    v_readfirstlane_b32 s4, v{PG}
    s_cmp_lg_u32 s4, 0
    s_cbranch_scc1 L_c_g1
    """)
    f1pub(0)
    k(f"""
    s_cmp_lt_u32 s25, 30
    s_cbranch_scc1 L_c_g1w
    """)
    stamp(k, 5)
    k("s_branch L_attn")
    k("L_c_g1w:")
    k("s_mov_b32 s7, 1")
    lds_wait(k, 24, C_H, PG, 1, sleep=1)
    k("L_c_g1:")
    HB = 136
    def hload(st, ks):
        return f"buffer_load_dwordx4 {vr(HB+st*16+ks*4,4)}, v{21 if ks >= 2 else 20}, s[20:23], s29 offen offset:{(ks&1)*2048} sc1"
    def hnext():
        k("""
        s_lshl_b32 s29, s8, 13
        s_add_u32 s29, s29, s28
        s_add_u32 s8, s8, 1
        s_and_b32 s8, s8, 7
        """)
    for st in range(2):
        hnext()
        for ks in range(4): k(hload(st, ks))
    hnext()
    k("""
    s_cmp_lg_u32 s7, 0
    s_cbranch_scc1 L_c_nofl
    """)
    f1pub(8)
    k("L_c_nofl:")
    def wr(sl, ks, buf):
        return [f"ds_read_b64_tr_b16 {vr(FW+buf*12+j*4+u*2,2)}, v{vW1} offset:{sl*16384+ks*3072+u*768+j*64}" for j in range(3) for u in range(2)]
    lds_wait_min4(k, 24, C_PROG, PG, 9)
    k.emit(wr(0, 0, 0))
    k("s_mov_b32 s9, 0")
    k("s_mov_b32 s31, 10")
    for it in range(2):
        if it == 0:
            k(".p2align 3")
            k("L_gloop:")
        for sl in range(2):
            for ks in range(4):
                buf = ks & 1
                first = False
                def mf(j):
                    a = ACC + j*16
                    k(f"v_mfma_f32_32x32x16_bf16 {vr(a,16)}, {vr(FW+buf*12+j*4,4)}, {vr(HB+sl*16+ks*4,4)}, {vr(a,16)}")
                lastk = (it == 1 and sl == 1 and ks == 3)
                r = [] if lastk else (wr(sl, ks+1, buf ^ 1) if ks < 3 else wr(sl+1, 0, buf ^ 1))
                vm = 7 if it == 0 else 7 - (sl*4 + ks)
                k(f"s_waitcnt vmcnt({vm}) lgkmcnt(4)")
                k("s_nop 0")
                mf(0)
                if ks == 3 and not lastk:
                    ok = k.lab("gok")
                    k(f"""
                    v_min3_u32 v{PG}, v{PG}, v{PG+1}, v{PG+2}
                    v_min_u32 v{PG}, v{PG}, v{PG+3}
                    s_nop 0
                    v_readfirstlane_b32 s4, v{PG}
                    s_cmp_ge_u32 s4, s31
                    s_cbranch_scc1 {ok}
                    """)
                    lds_wait_min4(k, 24, C_PROG, PG, "s31")
                    k(f"{ok}:")
                    k("s_add_u32 s31, s31, 1")
                    k(".p2align 3")
                if ks == 2: k(f"ds_read_b128 {vr(PG,4)}, v24 offset:{C_PROG}")
                k.emit(r[0:2])
                k(f"s_waitcnt lgkmcnt({(5 if ks == 2 else 4) if r else 2})")
                k("s_nop 0")
                mf(1); k.emit(r[2:4])
                k(f"s_waitcnt lgkmcnt({(5 if ks == 2 else 4) if r else 0})")
                k("s_nop 0")
                mf(2); k.emit(r[4:6])
                if it == 0: k(hload(sl, ks))
            if it == 0: hnext()
        if it == 0:
            k(f"""
            v_add_u32 v{vW1}, 32768, v{vW1}
            s_add_u32 s9, s9, 1
            s_cmp_lt_u32 s9, 3
            s_cbranch_scc1 L_gloop
            """)
    k(f"""
    v_add_u32 v26, 1, v26
    s_mov_b64 exec, 1
    ds_write_b32 v27, v26
    s_mov_b64 exec, -1
    """)
    g1_ids(k, 4, 5, 6)
    k(f"""
    s_mul_i32 s10, s5, 15
    s_add_u32 s10, s10, s4
    s_lshl_b32 s10, s10, 2
    s_add_u32 s10, s10, s3         ; (dq*15+fb)*4+g
    s_mul_i32 s10, s10, {3*8192}
    s_lshl_b32 s11, s6, 11
    s_add_u32 s10, s10, s11
    s_add_u32 s10, s10, {PF}
    s_lshl_b32 s11, s5, 4
    s_add_u32 s11, s11, s4
    s_lshl_b32 s11, s11, 2
    s_add_u32 s11, s11, s3
    s_lshl_b32 s11, s11, 2
    s_add_u32 s11, s11, s6
    s_lshl_b32 s11, s11, 7
    s_add_u32 s11, s11, {FP}
    s_mov_b32 s7, 1
    """)
    for j in range(24): k(f"v_cvt_pk_bf16_f32 v{SD+j}, v{ACC+2*j}, v{ACC+2*j+1}")
    stamp(k, 5)
    Q, C, O, S0, S1, K0, K1, V0a, V0b, V1 = 4, 8, 24, 40, 56, 72, 76, 80, 84, 88
    IDX, AK, AV0, AV1, T0, T1, VZ, VC, L16, ONE = 92, 93, 94, 95, 96, 97, 98, 99, 100, 101
    S = [S0, S1]; V0 = [V0a, V0b]; KF = [K0, K1]
    def attn_ids(k):
        k(f"""
        s_lshl_b32 s26, s24, 2
        s_lshr_b32 s27, s25, 3
        s_add_u32 s26, s26, s27        ; head
        s_and_b32 s27, s25, 7
        s_lshl_b32 s27, s27, 3         ; qb*8
        """)
    k("L_attn:")
    k(f"""
    v_lshlrev_b32 v{L16}, 4, v2
    v_mov_b32 v{VZ}, {CNT}
    """)
    attn_ids(k)
    k(f"""
    s_add_u32 s27, s27, s3         ; qtile
    v_mov_b32 v{IDX}, 0xdddddddd
    v_mov_b32 v{VC}, {CNT + 4}
    v_mov_b32 v{ONE}, 1
    s_mov_b32 s8, 0
    s_mov_b32 s9, 0
    s_cmp_lt_u32 s3, 4
    s_cbranch_scc1 L_a_c0
    s_mov_b32 s7, 0
    s_lshl_b32 s28, s26, 17
    s_lshl_b32 s29, s3, 12
    s_add_u32 s28, s28, s29
    s_add_u32 s28, s28, {KV}
    s_mul_i32 s29, s3, {2*KVP}
    """)
    lds_wait_min4(k, VZ, C_FREE, S0, "s6")
    lds_wait(k, VZ, C_GO, T0, 1, sleep=0)
    def kvdma(c):
        out = []
        for i in range(2):
            out += [f"s_add_u32 m0, s29, {(8*c+i)*KVP}",
                    f"s_add_u32 s32, s28, {(8*c+i)*2048}",
                    f"buffer_load_dwordx4 v{L16}, s[20:23], s32 offen sc1 lds",
                    f"buffer_load_dwordx4 v{L16}, s[20:23], s32 offen offset:1024 sc1 lds"]
        return out
    k.emit(kvdma(0)); k.emit(kvdma(1))
    k(f"""
    v_mul_u32_u24 v{T0}, {KVP}, v2
    v_mov_b32 v{S0}, 0x3f803f80
    v_mov_b32 v{S0+1}, 0x3f803f80
    v_mov_b32 v{S0+2}, 0x3f803f80
    v_mov_b32 v{S0+3}, 0x3f803f80
    ds_write_b128 v{T0}, {vr(S0,4)} offset:2048
    """)
    get_nonce(k, VZ, T0)
    for c in range(1, 8):
        if c + 2 <= 7:
            k.emit(kvdma(c+1))
            k("s_waitcnt vmcnt(8)")
        else:
            k(f"s_waitcnt vmcnt({(7-c)*4})")
        lds_add(k, VZ, ONE, [4*c, C_ALL])
    k("L_a_c0:")
    lds_wait(k, VZ, C_C0, T0, 4, sleep=0)
    stamp(k, 6)
    k(f"""
    s_lshl_b32 s4, s3, 10
    s_add_u32 s4, s4, {QST}
    v_add_u32 v{T0}, s4, v{L16}
    ds_read_b128 {vr(K0,4)}, v{L16}
    ds_read_b128 {vr(Q,4)}, v{T0}
    s_waitcnt lgkmcnt(0)
    v_mfma_f32_32x32x16_bf16 {vr(S0,16)}, {vr(K0,4)}, {vr(Q,4)}, 0
    s_mov_b64 exec, 1
    ds_add_u32 v{VZ}, v{ONE} offset:{C_QRD}
    s_mov_b64 exec, -1
    s_nop 12
    v_max3_f32 v{T0}, v{S0}, v{S0+1}, v{S0+2}
    """)
    for j in range(3, 15, 2): k(f"v_max3_f32 v{T0}, v{T0}, v{S0+j}, v{S0+j+1}")
    k(f"v_max_f32 v{T0}, v{T0}, v{S0+15}")
    k("L_a_setmax:")
    k(f"""
    v_mov_b32 v{T1}, v{T0}
    v_mov_b32 v{AK}, v{L16}
    v_and_b32 v{C}, 16, v2
    v_permlane32_swap_b32 v{T0}, v{T1}
    v_cmp_eq_u32 vcc, 0, v{C}
    v_mov_b32 v{C}, 1024
    v_mov_b32 v{C+1}, 768
    v_max_f32 v{T0}, v{T0}, v{T1}
    v_cndmask_b32 v{AV0}, v{C}, v{L16}, vcc
    v_cndmask_b32 v{AV1}, v{C+1}, v{L16}, vcc
    s_nop 0
    ds_read_b128 {vr(K0,4)}, v{AK}
    ds_read_b128 {vr(V0a,4)}, v{AV0} offset:1024
    ds_read_b128 {vr(V1,4)}, v{AV0} offset:1024
    ds_read_b128 {vr(K1,4)}, v{AK} offset:{KVP}
    """)
    for r in range(16): k(f"v_sub_f32 v{C+r}, 0, v{T0}")
    for r in range(16): k(f"v_mov_b32 v{O+r}, 0")
    for r in range(8): k(f"v_mov_b32 v{S1+8+r}, 0")
    k(f"""
    s_waitcnt lgkmcnt(0)
    v_mfma_f32_32x32x16_bf16 {vr(S0,16)}, {vr(K0,4)}, {vr(Q,4)}, {vr(C,16)}
    ds_read_b128 {vr(K0,4)}, v{AK} offset:{2*KVP}
    s_mov_b32 s33, 0
    s_cmp_lt_u32 s3, 4
    s_cselect_b32 s32, {int(os.environ.get("TD", "53")) // 16}, 99
    s_setprio {3 if "L" in OPT else 2}
    s_nop 10
    """)
    stamp(k, 7)
    k(".p2align 6")
    k("L_a_loop:")
    NT = 16
    TD = int(os.environ.get("TD", "53"))
    assert TD % 16 not in (4, 12, 6, 14, 15)
    for t in range(NT):
        cur = S[t & 1]; prv = S[(t+1) & 1]
        e = lambda a, b: [f"v_exp_f32 v{cur+i}, v{cur+i}" for i in range(a, b)]
        k.emit(e(0, 2))
        k(f"v_smfmac_f32_32x32x32_bf16 {vr(O,16)}, {vr(V1,4)}, {vr(prv+8,8)}, v{IDX}")
        k(f"ds_read_b128 {vr(V1,4)}, v{AV1} offset:{t*KVP+1024+256}")
        k(f"ds_read_b128 {vr(V0[(t+1)&1],4)}, v{AV0} offset:{(t+1)*KVP+1024}")
        k.emit(e(2, 6))
        k(f"v_mfma_f32_32x32x16_bf16 {vr(prv,16)}, {vr(KF[(t+1)&1],4)}, {vr(Q,4)}, {vr(C,16)}")
        k(f"ds_read_b128 {vr(KF[(t+1)&1],4)}, v{AK} offset:{(t+3)*KVP}")
        k.emit(e(6, 12))
        k(f"v_smfmac_f32_32x32x32_bf16 {vr(O,16)}, {vr(V0[t&1],4)}, {vr(cur,8)}, v{IDX}")
        k("s_waitcnt lgkmcnt(1)")
        if t % 8 == 4: k("s_cmp_lg_u32 s9, 0")
        elif t == 6: k("s_cmp_eq_u32 s7, 0")
        elif "B" in OPT and t == TD % 16: k("s_cmp_lg_u32 s33, s32")
        elif "B" not in OPT and t == 8: k("s_cmp_lg_u32 s33, 2")
        elif "B" not in OPT and t == 13: k("s_cmp_lg_u32 s33, 3")
        elif t == NT-2: k("s_add_u32 s33, s33, 1")
        elif t == NT-1: k(f"s_cmp_lt_u32 s33, {64//NT}")
        else: k("s_nop 0")
        k.emit(e(12, 16))
        if t % 8 == 4:
            sk = k.lab("rdy"); pl = k.lab("poll")
            k(f"""
            s_cbranch_scc1 {sk}
{pl}:
            ds_read_b32 v{T0}, v{VC}
            ds_read_b32 v{T1}, v{VZ} offset:{C_ALL}
            s_waitcnt lgkmcnt(0)
            v_readfirstlane_b32 s4, v{T0}
            v_readfirstlane_b32 s5, v{T1}
            s_cmp_lt_u32 s4, 4
            s_cbranch_scc1 {pl}
            s_cmp_ge_u32 s5, 28
            s_cselect_b32 s9, 1, 0
            v_add_u32 v{VC}, 4, v{VC}
            .p2align 3
{sk}:
            """)
        if t == 6:
            k(f"""
            s_cbranch_scc0 L_a_pub
            s_nop 0
L_a_pubret:
            """)
        if "B" in OPT and t == TD % 16:
            sk = k.lab("lad")
            k(f"""
            s_cbranch_scc1 {sk}
            s_setprio 1
{sk}:
            """)
        if "B" not in OPT and t in (8, 13):
            sk = k.lab("lad")
            k(f"""
            s_cbranch_scc1 {sk}
            s_setprio {(1 if t == 8 else 0) + (1 if "L" in OPT else 0)}
{sk}:
            """)
    k(f"""
    v_add_u32 v{AK}, {NT*KVP}, v{AK}
    v_add_u32 v{AV0}, {NT*KVP}, v{AV0}
    v_add_u32 v{AV1}, {NT*KVP}, v{AV1}
    s_cbranch_scc1 L_a_loop
    v_smfmac_f32_32x32x32_bf16 {vr(O,16)}, {vr(V1,4)}, {vr(S1+8,8)}, v{IDX}
    s_waitcnt lgkmcnt(0)
    s_setprio 3
    s_nop 15
    s_cmp_lg_u32 s8, 0
    s_cbranch_scc1 L_a_fin
    v_max3_f32 v{T0}, abs(v{O}), abs(v{O+1}), abs(v{O+2})
    v_max3_f32 v{T0}, v{T0}, abs(v{O+3}), abs(v{O+4})
    v_max3_f32 v{T0}, v{T0}, abs(v{O+5}), abs(v{O+6})
    v_max_f32 v{T0}, v{T0}, abs(v{O+7})
    v_add_f32 v{T1}, v{O}, v{O+1}
    v_add_f32 v{T1}, v{T1}, v{O+2}
    v_add_f32 v{T1}, v{T1}, v{O+3}
    v_add_f32 v{T1}, v{T1}, v{O+4}
    v_add_f32 v{T1}, v{T1}, v{O+5}
    v_add_f32 v{T1}, v{T1}, v{O+6}
    v_add_f32 v{T1}, v{T1}, v{O+7}
    s_mov_b32 s4, {f32(2.0**40)}
    s_mov_b32 s5, {f32(2.0**120)}
    v_cmp_gt_f32 vcc, s4, v{O+8}
    v_cmp_gt_f32 s[6:7], s5, v{T0}
    v_cmp_o_f32 s[10:11], v{T1}, v{T1}
    s_and_b64 vcc, vcc, s[6:7]
    s_and_b64 vcc, vcc, s[10:11]
    s_cmp_eq_u64 vcc, exec
    s_cbranch_scc1 L_a_fin
    s_mov_b32 s7, 0
    s_mov_b32 s8, 1
    s_mov_b32 s9, 1
    v_mov_b32 v{AK}, v{L16}
    v_mov_b32 v{T0}, 0xff800000
    s_mov_b32 s33, 0
L_a_maxloop:
    ds_read_b128 {vr(K0,4)}, v{AK}
    s_waitcnt lgkmcnt(0)
    v_mfma_f32_32x32x16_bf16 {vr(S0,16)}, {vr(K0,4)}, {vr(Q,4)}, 0
    v_add_u32 v{AK}, {KVP}, v{AK}
    s_nop 15
    """)
    for j in range(0, 16, 2): k(f"v_max3_f32 v{T0}, v{T0}, v{S0+j}, v{S0+j+1}")
    k(f"""
    s_add_u32 s33, s33, 1
    s_cmp_lt_u32 s33, 64
    s_cbranch_scc1 L_a_maxloop
    s_branch L_a_setmax
L_a_pub:
    s_cmp_eq_u32 s7, 2
    s_cbranch_scc1 L_a_pub2
    s_mov_b32 s7, 2
    """)
    for j in range(3):
        k(f"s_add_u32 s4, s10, {j*8192}")
        k(f"buffer_store_dwordx4 {vr(SD+8*j,4)}, v{L16}, s[20:23], s4 offen sc1")
        k(f"buffer_store_dwordx4 {vr(SD+8*j+4,4)}, v{L16}, s[20:23], s4 offen offset:1024 sc1")
    k("s_branch L_a_pubret")
    k("L_a_pub2:")
    k("s_mov_b32 s7, 0")
    flag_store(k, 11, T0, T1)
    k(f"""
    s_branch L_a_pubret
L_a_fin:
    v_rcp_f32 v{T0}, v{O+8}
    """)
    lds_add(k, VZ, ONE, [C_DONE])
    stamp(k, 8)
    k(f"""
    s_lshr_b32 s4, s27, 1
    s_lshl_b32 s4, s4, 6
    s_lshl_b32 s5, s26, 1
    s_add_u32 s4, s4, s5
    s_and_b32 s5, s27, 1
    s_add_u32 s4, s4, s5           ; (st*32+h)*2+sg
    s_lshl_b32 s30, s4, 10
    s_add_u32 s30, s30, {OF}
    s_lshl_b32 s31, s4, 7
    s_add_u32 s31, s31, {FO_}
    """)
    for r in range(8): k(f"v_mul_f32 v{O+r}, v{O+r}, v{T0}")
    for j in range(4): k(f"v_cvt_pk_bf16_f32 v{K0+j}, v{O+2*j}, v{O+2*j+1}")
    k(f"buffer_store_dwordx4 {vr(K0,4)}, v{L16}, s[20:23], s30 offen sc1")
    flag_store(k, 31, T0, T1)
    stamp(k, 9)
    k(f"""
    s_cmp_ge_u32 s3, 4
    s_cbranch_scc1 L_f_load
    """)
    stamp(k, 10); stamp(k, 11)
    stamp_flush(k, 12)
    k("s_endpgm")
    def final_ids(k):
        k(f"""
        s_lshr_b32 s26, s24, 1
        s_lshl_b32 s26, s26, 3
        s_lshr_b32 s27, s25, 2
        s_add_u32 s26, s26, s27
        s_and_b32 s27, s24, 1
        s_lshl_b32 s27, s27, 2
        s_and_b32 s4, s25, 3
        s_add_u32 s27, s27, s4
        """)
    k("L_f_load:")
    final_ids(k)
    srd(k, 12, P_WO, 512*512*2)
    dma_addr(k, 4, 1024, 5, 6)
    k(f"""
    s_sub_u32 s33, s3, 4
    s_lshl_b32 s30, s33, 12
    s_lshl_b32 s28, s26, 16
    s_add_u32 s28, s28, s30
    s_add_u32 s28, s28, {OF}
    s_lshl_b32 s29, s33, 15
    s_lshl_b32 s31, s27, 7
    s_add_u32 s29, s29, s31
    """)
    lds_wait(k, VZ, C_DONE, T0, 8)
    for j in range(4):
        for i in range(4):
            k(f"s_add_u32 m0, s30, {j*32768 + 16384 + i*1024}")
            k(f"s_add_u32 s31, s29, {j*131072 + i*8192}")
            k(f"buffer_load_dwordx4 v4, s[12:15], s31 offen lds")
    stamp(k, 10)
    k(f"""
    s_cmp_lg_u32 s3, 4
    s_cbranch_scc1 L_f_wait
    s_lshl_b32 s31, s26, 13
    s_add_u32 s31, s31, {FO_}
    v_lshlrev_b32 v{T1}, 7, v2
    """)
    flag_poll(k, T1, 31, T0, sleep=1)
    lds_add(k, VZ, ONE, [C_GO2])
    k("s_branch L_f_go")
    k("L_f_wait:")
    lds_wait(k, VZ, C_GO2, T0, 1, sleep=0)
    k("L_f_go:")
    stamp(k, 11)
    for j in range(4):
        k(f"s_add_u32 m0, s30, {j*32768}")
        k(f"s_add_u32 s31, s28, {j*16384}")
        for i in range(4):
            k(f"buffer_load_dwordx4 v{L16}, s[20:23], s31 offen offset:{i*1024} sc1 lds")
    for j in range(4):
        k(f"s_waitcnt vmcnt({12-4*j})")
        lds_add(k, VZ, ONE, [C_ST+4*j])
    stamp_flush(k, 12)
    k("s_endpgm")

    k("L_m_mid:")
    k(f"""
    v_lshlrev_b32 v15, 7, v2
    s_cmp_lg_u32 s33, 0
    s_cbranch_scc1 L_m_i5
    s_cmp_ge_u32 s25, 30
    s_cbranch_scc1 L_m_i5
    s_lshr_b32 s31, s24, 1
    s_lshl_b32 s31, s31, 13
    s_add_u32 s31, s31, {FH}
    """)
    lds_wait_min4(k, MG.vZ, C_FREE, MG.T, int(os.environ.get("HP", "6")), sleep=3)
    flag_poll(k, 15, 31, MG.T, sleep=2)
    lds_add(k, MG.vZ, MG.vOne, [C_H])
    k("L_m_i5:")
    stamp(k, 3)
    attn_ids(k)
    k(f"""
    s_lshl_b32 s28, s26, 17
    s_lshl_b32 s29, s33, 12
    s_add_u32 s28, s28, s29
    s_add_u32 s28, s28, {KV}
    s_mul_i32 s29, s33, {2*KVP}
    s_lshl_b32 s30, s26, 16
    s_lshl_b32 s4, s27, 10
    s_add_u32 s30, s30, s4
    s_lshl_b32 s4, s33, 11
    s_add_u32 s30, s30, s4
    s_add_u32 s6, s4, {QST}
    s_cmp_lg_u32 s33, 0
    s_cbranch_scc1 L_m_j2
    s_lshr_b32 s31, s26, 1
    s_lshl_b32 s31, s31, 13
    s_add_u32 s31, s31, {F1}
    """)
    lds_wait(k, MG.vZ, C_PUB, MG.T, 4, sleep=2)
    flag_poll(k, 15, 31, MG.T, sleep=1)
    lds_add(k, MG.vZ, MG.vOne, [C_GO])
    k("L_m_j2:")
    lds_wait(k, MG.vZ, C_PUB, MG.T, 4, sleep=6)
    lds_wait(k, MG.vZ, C_GO, MG.T, 1, sleep=1)
    stamp(k, 4)
    k(f"""
    s_mov_b32 m0, s6
    s_add_u32 s32, s28, 2048
    buffer_load_dwordx4 v{MG.vL16}, s[20:23], s30 offen sc1 lds
    buffer_load_dwordx4 v{MG.vL16}, s[20:23], s30 offen offset:1024 sc1 lds
    s_mov_b32 m0, s29
    s_nop 0
    buffer_load_dwordx4 v{MG.vL16}, s[20:23], s28 offen sc1 lds
    buffer_load_dwordx4 v{MG.vL16}, s[20:23], s28 offen offset:1024 sc1 lds
    s_add_u32 m0, s29, {KVP}
    s_nop 0
    buffer_load_dwordx4 v{MG.vL16}, s[20:23], s32 offen sc1 lds
    buffer_load_dwordx4 v{MG.vL16}, s[20:23], s32 offen offset:1024 sc1 lds
    s_waitcnt vmcnt(0)
    """)
    lds_add(k, MG.vZ, MG.vOne, [C_C0])
    stamp(k, 5)
    k(f"""
    s_setprio {0 if "L" in OPT else 3}
    s_mul_i32 s30, s33, 6144
    s_add_u32 s30, s30, {MRING}
    v_add_u32 v{MG.vWr}, s30, v{MG.vL16}
    s_lshr_b32 s8, s33, 1          ; a
    s_and_b32 s9, s33, 1           ; b
    """)
    for r in range(1, 4):
        k(f"""
        s_xor_b32 s31, s33, {r}
        s_mul_i32 s31, s31, 6144
        s_add_u32 s31, s31, {MRING}
        v_add_u32 v{MG.vRd+r-1}, s31, v{MG.vL16}
        """)
    srd(k, 16, P_B1, 1376*2)
    srd(k, 60, P_W2, 1376*2048*2)
    srd(k, 12, P_WO, 512*512*2)
    lds_wait(k, MG.vZ, C_QRD, MG.T, 8, sleep=2)
    k(f"""
    s_cmp_lg_u32 s33, 3
    s_cbranch_scc1 L_m_red
    """)
    if "p" not in OPT:
        k(f"""
        v_lshrrev_b32 v128, 3, v2
        v_and_b32 v129, 7, v2
        v_lshlrev_b32 v130, 12, v128
        v_lshl_add_u32 v130, v129, 7, v130
        s_lshr_b32 s27, s24, 1
        s_lshl_b32 s27, s27, 10
        s_mov_b32 s28, s25
L_m_pf2:
        s_lshl_b32 s10, s28, 15
        s_add_u32 s10, s10, s27
        buffer_load_dword v132, v130, s[60:63], s10 offen
        s_add_u32 s28, s28, 32
        s_cmp_lt_u32 s28, 172
        s_cbranch_scc1 L_m_pf2
        v_lshrrev_b32 v128, 2, v2
        v_and_b32 v129, 3, v2
        v_lshlrev_b32 v130, 10, v128
        v_lshl_add_u32 v130, v129, 7, v130
        s_and_b32 s27, s24, 1
        s_lshl_b32 s27, s27, 9
        s_lshl_b32 s10, s25, 14
        s_add_u32 s10, s10, s27
        buffer_load_dword v132, v130, s[12:15], s10 offen
        """)
    stamp(k, 6)
    k("s_branch L_m_g2")
    k("L_m_red:")
    g1_ids(k, 26, 27, 28)
    k(f"""
    s_cmp_ge_u32 s25, 30
    s_cbranch_scc1 L_m_skipred
    s_mul_i32 s29, s26, 3
    s_add_u32 s29, s29, s33
    s_cmp_ge_u32 s29, 44
    s_cbranch_scc1 L_m_skipred
    s_lshl_b32 s10, s27, 4
    s_add_u32 s10, s10, s26
    s_lshl_b32 s10, s10, 2
    s_add_u32 s10, s10, s28
    s_lshl_b32 s10, s10, 9
    s_add_u32 s10, s10, {FP}
    v_and_b32 v15, 3, v2
    v_lshlrev_b32 v15, 7, v15
    s_lshl_b32 s11, s29, 6
    v_lshrrev_b32 v{MG.T+1}, 5, v2
    v_lshlrev_b32 v{MG.T+1}, 3, v{MG.T+1}
    """)
    for q in range(4): k(f"buffer_load_dwordx2 {vr(MG.RF+2*q,2)}, v{MG.T+1}, s[16:19], s11 offen offset:{q*16}")
    flag_poll(k, 15, 10, MG.T, sleep=4)
    stamp(k, 6)
    k(f"""
    s_mul_i32 s10, s27, 15
    s_add_u32 s10, s10, s26
    s_lshl_b32 s10, s10, 2
    s_add_u32 s10, s10, s28
    s_mul_i32 s10, s10, 3
    s_add_u32 s10, s10, s33
    s_lshl_b32 s10, s10, 13
    s_add_u32 s10, s10, {PF}
    s_add_u32 s11, s10, 4096
    """)
    P = MG.FO
    for q in range(8):
        k(f"buffer_load_dwordx4 {vr(P+4*q,4)}, v{MG.vL16}, s[20:23], s{10 if q < 4 else 11} offen offset:{(q&3)*1024} sc1")
    B = A + 16; T = A + 32
    k("s_mov_b32 s6, 0xffff0000")
    for q in range(4):
        for j in range(2):
            k(f"v_lshlrev_b32 v{A+4*q+2*j}, 16, v{MG.RF+2*q+j}")
            k(f"v_and_b32 v{A+4*q+2*j+1}, s6, v{MG.RF+2*q+j}")
    for kq in range(4):
        k(f"s_waitcnt vmcnt({6-2*kq})")
        for j in range(8):
            k(f"v_lshlrev_b32 v{B+2*j}, 16, v{P+8*kq+j}")
            k(f"v_and_b32 v{B+2*j+1}, s6, v{P+8*kq+j}")
        for r in range(16): k(f"v_add_f32 v{A+r}, v{A+r}, v{B+r}")
    c0 = math.sqrt(2/math.pi)
    k(f"s_mov_b32 s10, {f32(-2*LOG2E*c0*0.044715)}")
    k(f"v_mov_b32 v15, {f32(-2*LOG2E*c0)}")
    for r in range(16): k(f"v_mul_f32 v{T+r}, v{A+r}, v{A+r}")
    for r in range(16): k(f"v_fma_f32 v{T+r}, v{T+r}, s10, v15")
    for r in range(16): k(f"v_mul_f32 v{T+r}, v{T+r}, v{A+r}")
    for r in range(16): k(f"v_exp_f32 v{T+r}, v{T+r}")
    for r in range(16): k(f"v_add_f32 v{T+r}, 1.0, v{T+r}")
    for r in range(16): k(f"v_rcp_f32 v{T+r}, v{T+r}")
    for r in range(16): k(f"v_mul_f32 v{A+r}, v{A+r}, v{T+r}")
    for j in range(8): k(f"v_cvt_pk_bf16_f32 v{B+j}, v{A+2*j}, v{A+2*j+1}")
    k(f"""
    s_lshl_b32 s4, s27, 1
    s_lshr_b32 s5, s28, 1
    s_add_u32 s4, s4, s5           ; dt
    s_and_b32 s5, s28, 1           ; di
    s_mul_i32 s10, s4, {UKS*2048}
    s_lshl_b32 s31, s29, 12
    s_add_u32 s10, s10, s31
    s_lshl_b32 s31, s5, 10
    s_add_u32 s10, s10, s31
    s_add_u32 s10, s10, {UF}
    buffer_store_dwordx4 {vr(B,4)}, v{MG.vL16}, s[20:23], s10 offen sc1
    buffer_store_dwordx4 {vr(B+4,4)}, v{MG.vL16}, s[20:23], s10 offen offset:2048 sc1
    s_lshl_b32 s10, s4, 14
    s_lshl_b32 s31, s29, 8
    s_add_u32 s10, s10, s31
    s_lshl_b32 s31, s5, 7
    s_add_u32 s10, s10, s31
    s_add_u32 s10, s10, {FU}
    """)
    flag_store(k, 10, MG.T+1, MG.T+2)
    k("s_branch L_m_g2")
    k("L_m_skipred:")
    stamp(k, 6)
    k("L_m_g2:")
    final_ids(k)
    srd(k, 16, P_B2, 2048*2)
    k(f"""
    s_mul_i32 s28, s33, {22*16*4096}
    s_lshl_b32 s31, s26, 7
    s_add_u32 s28, s28, s31
    s_mul_i32 s29, s27, {UKS*2048}
    s_mul_i32 s31, s33, {22*2048}
    s_add_u32 s29, s29, s31
    s_add_u32 s29, s29, {UF}
    s_lshl_b32 s10, s9, 6
    s_lshl_b32 s31, s8, 10
    v_xor_b32 v{MG.vL0}, s31, v{MG.vL16}
    v_xor_b32 v{MG.vL1}, 1024, v{MG.vL0}
    """)
    dma_addr(k, MG.vDma, 4096, MG.T, MG.T+1)
    mg_tr_setup(k, True, 10)
    k(f"""
    v_min_u32 v15, 21, v2
    v_lshlrev_b32 v15, 7, v15
    s_lshl_b32 s10, s27, 14
    s_mul_i32 s31, s33, {22*128}
    s_add_u32 s10, s10, s31
    s_add_u32 s10, s10, {FU}
    """)
    flag_poll(k, 15, 10, MG.T, sleep=8)
    stamp(k, 7)
    if "t" not in OPT:
        k(f"""
        s_and_b32 s31, s26, 7
        s_mul_i32 s31, s31, {44*128}
        s_add_u32 s31, s31, s29
        v_min_u32 v{MG.T+1}, 43, v2
        v_lshlrev_b32 v{MG.T+1}, 7, v{MG.T+1}
        buffer_load_dword v{MG.T+3}, v{MG.T+1}, s[20:23], s31 offen sc1
        """)
    if "B" in OPT: k("s_setprio 0")
    Seg(22, 60, 28, 4096, 29, False, True, fo_flags=" sc1").run(k)
    if "B" in OPT: k("s_setprio 3")
    stamp(k, 8)
    k(f"""
    v_and_b32 v15, 31, v2
    s_lshl_b32 s10, s26, 6
    s_lshl_b32 s31, s9, 5
    s_add_u32 s10, s10, s31
    v_add_u32 v15, s10, v15
    v_lshlrev_b32 v{MG.T+1}, 2, v15
    v_lshlrev_b32 v15, 1, v15
    s_mov_b32 s10, {GF}
    buffer_load_dword v{MG.RF}, v{MG.T+1}, s[20:23], s10 offen sc1
    buffer_load_ushort v{MG.RF+1}, v15, s[16:19], 0 offen
    """)
    mg_reduce(k)
    G = MG.RF; BA = A + 16; FOb = A + 32; FWb = A + 48
    srd(k, 12, P_OUT, 2048*512*2)
    k(f"""
    s_waitcnt vmcnt(0)
    v_sub_f32 v{G+2}, 1.0, v{G}
    v_lshlrev_b32 v{G+1}, 16, v{G+1}
    """)
    for r in range(16): k(f"v_add_f32 v{A+r}, v{A+r}, v{G+1}")
    for r in range(16): k(f"v_mul_f32 v{A+r}, v{A+r}, v{G+2}")
    for r in range(16): k(f"v_mov_b32 v{BA+r}, 0")
    tr_addr(k, 5, True, MG.T, MG.T+1)
    k(f"""
    s_lshl_b32 s31, s8, 6
    v_xor_b32 v5, s31, v5
    v_add_u32 v5, 16384, v5
    s_lshl_b32 s31, s9, 10
    v_add_u32 v4, s31, v{MG.vL16}
    v_and_b32 v10, 31, v2
    v_lshlrev_b32 v10, 10, v10
    v_lshrrev_b32 v11, 5, v2
    v_lshl_add_u32 v10, v11, 4, v10
    s_lshl_b32 s28, s26, 16
    s_lshl_b32 s31, s9, 15
    s_add_u32 s28, s28, s31
    s_lshl_b32 s31, s27, 7
    s_add_u32 s28, s28, s31
    s_lshl_b32 s31, s8, 6
    s_add_u32 s28, s28, s31
    s_mov_b32 s29, 0
    v_add_u32 v6, {C_ST}, v{MG.vZ}
    s_setprio 0
    """)
    stamp(k, 9)
    lds_wait(k, MG.vZ, C_GO2, MG.T, 1, sleep=2)
    k("s_setprio 3")
    stamp(k, 10)
    k("L_f_loop:")
    lds_wait(k, 6, 0, MG.T, 4, sleep=0)
    def rd(ks):
        b = ks & 3
        return [f"ds_read_b128 {vr(FOb+4*b,4)}, v4 offset:{ks*2048}",
                f"ds_read_b64_tr_b16 {vr(FWb+4*b,2)}, v5 offset:{ks*2048}",
                f"ds_read_b64_tr_b16 {vr(FWb+4*b+2,2)}, v5 offset:{ks*2048+1024}"]
    for ks in range(4): k.emit(rd(ks))
    for ks in range(8):
        b = ks & 3
        rem = min(ks+4, 8) - (ks+1)
        k(f"s_waitcnt lgkmcnt({rem*3})")
        k(f"v_mfma_f32_32x32x16_bf16 {vr(BA,16)}, {vr(FWb+4*b,4)}, {vr(FOb+4*b,4)}, {vr(BA,16)}")
        if ks + 4 < 8: k.emit(rd(ks+4))
    k(f"""
    v_add_u32 v4, 32768, v4
    v_add_u32 v5, 32768, v5
    v_add_u32 v6, 4, v6
    s_add_u32 s29, s29, 1
    s_cmp_lt_u32 s29, 4
    s_cbranch_scc1 L_f_loop
    s_nop 12
    """)
    stamp(k, 11)
    for r in range(16): k(f"v_fmac_f32 v{A+r}, v{BA+r}, v{G}")
    Bq = FOb
    for j in range(8): k(f"v_cvt_pk_bf16_f32 v{Bq+j}, v{A+2*j}, v{A+2*j+1}")
    k(f"""
    s_nop 1
    v_permlane32_swap_b32 v{Bq}, v{Bq+2}
    v_permlane32_swap_b32 v{Bq+1}, v{Bq+3}
    v_permlane32_swap_b32 v{Bq+4}, v{Bq+6}
    v_permlane32_swap_b32 v{Bq+5}, v{Bq+7}
    s_nop 1
    buffer_store_dwordx4 {vr(Bq,4)}, v10, s[12:15], s28 offen
    buffer_store_dwordx4 {vr(Bq+4,4)}, v10, s[12:15], s28 offen offset:32
    """)
    stamp_flush(k, 12)
    k(f"{end}:")
    k("s_endpgm")
    return k

if __name__ == "__main__":
    kk = fused()
    out = sys.argv[1] if len(sys.argv) > 1 else "gated_mix__softmax_full_mha__mixer_token_mlp__prompt.s"
    open(out, "w").write(build([kk]))
```

```python
import sys, math, struct, os
from asmlib import *

NAME = "gated_mix__softmax_full_mha__mixer_token_mlp__prompt_kernel"
QF = 0x000000
KV = 0x200000
HF = 0x600000
UF = 0x800000
GF = 0x980000
F1 = 0xC00000
FH = 0xD00000
FU = 0xC30000
FO_ = 0xC80000
OF = 0xA00000
PF = 0x1000000
FP = 0xCC0000
TS = 0xE00000
WS_BYTES = 0x10000000
UKS = 88
def f32(x): return f"{struct.unpack('<I', struct.pack('<f', x))[0]:#010x}"
LOG2E = 1.4426950408889634
STAMP = bool(os.environ.get("STAMP"))
OPT = os.environ.get("OPT", "")
SPIN = 0x40000
P_X, P_WQKV, P_WO, P_W1, P_B1, P_W2, P_B2, P_GW, P_OUT, P_DBG, P_WS = 36, 38, 40, 44, 46, 48, 50, 52, 54, 56, 58
NONCE = 35
KVP = 2064
MRING = 64*KVP
RB = 16896
QST = RB + 131072
CNT = MRING + 4*6144
C_ALL, C_M, C_GO, C_NONCE, C_DONE, C_GO2, C_PUB, C_ST = 64, 68, 72, 76, 80, 84, 88, 96
C_PROG, C_FREE, C_H, C_C0, C_QRD, C_STD = 112, 128, 144, 148, 152, 156

def stamp(k, i):
    if not STAMP: return
    k(f"""
    s_memrealtime s[92:93]
    s_memtime s[94:95]
    s_waitcnt lgkmcnt(0)
    s_mov_b32 s{64+2*i}, s92
    s_mov_b32 s{65+2*i}, s94
    """)
def stamp_flush(k, n):
    if not STAMP: return
    k("s_waitcnt vmcnt(0)")
    stamp(k, n)
    k(f"""
    s_lshl_b32 s92, s2, 11
    s_lshl_b32 s93, s3, 7
    s_add_u32 s92, s92, s93
    s_add_u32 s92, s92, {TS}
    s_mov_b64 exec, 1
    v_mov_b32 v1, 0
    """)
    for i in range(2*n+2):
        k(f"v_mov_b32 v0, s{64+i}")
        k(f"buffer_store_dword v0, v1, s[20:23], s92 offen offset:{4*i}")

def lds_wait(k, vaddr, off, vt, target, sleep=1, st=4):
    l = k.lab("lw"); d = k.lab("lwd")
    k(f"""
{l}:
    ds_read_b32 v{vt}, v{vaddr} offset:{off}
    s_waitcnt lgkmcnt(0)
    v_readfirstlane_b32 s{st}, v{vt}
    s_cmp_ge_u32 s{st}, {target}
    s_cbranch_scc1 {d}
    s_sleep {sleep}
    s_branch {l}
{d}:
    """)
def lds_add(k, vaddr, vone, offs):
    k("s_mov_b64 exec, 1")
    for o in offs: k(f"ds_add_u32 v{vaddr}, v{vone} offset:{o}")
    k("s_mov_b64 exec, -1")
def flag_poll(k, voff, soff, vt, sleep=2, sc=5):
    l = k.lab("fp"); d = k.lab("fpd")
    k(f"""
    s_mov_b32 s{sc}, 0
{l}:
    buffer_load_dword v{vt}, v{voff}, s[20:23], s{soff} offen sc1
    s_add_u32 s{sc}, s{sc}, 1
    s_waitcnt vmcnt(0)
    v_cmp_ne_u32 vcc, s{NONCE}, v{vt}
    s_and_b64 exec, exec, vcc
    s_cbranch_scc0 {d}
    s_sleep {sleep}
    s_cmp_lt_u32 s{sc}, {SPIN}
    s_cbranch_scc1 {l}
{d}:
    s_mov_b64 exec, -1
    """)
def flag_store(k, soff, va, vb):
    k(f"""
    v_mov_b32 v{va}, 0
    v_mov_b32 v{vb}, s{NONCE}
    s_waitcnt vmcnt(0)
    s_mov_b64 exec, 1
    buffer_store_dword v{vb}, v{va}, s[20:23], s{soff} offen sc1
    s_mov_b64 exec, -1
    """)
def get_nonce(k, vz, vt):
    k(f"""
    ds_read_b32 v{vt}, v{vz} offset:{C_NONCE}
    s_waitcnt lgkmcnt(0)
    v_readfirstlane_b32 s{NONCE}, v{vt}
    """)

class MG:
    ACC = 16; FO = 80; RF = 112
    vL0 = 3; vL1 = 4; vDma = 5; vTr = 6
    vZ = 8; vOne = 9; vRd = 10; vWr = 13; vL16 = 14
    T = 128
def tr_addr(k, dst, sigma, a, c):
    k(f"""
    v_bfe_u32 v{a}, v2, 2, 2
    v_lshrrev_b32 v{dst}, 5, v2
    v_lshl_add_u32 v{dst}, v{dst}, {2 if sigma else 3}, v{a}
    v_lshlrev_b32 v{dst}, 7, v{dst}
    v_bfe_u32 v{c}, v2, 4, 1
    v_lshl_add_u32 v{dst}, v{c}, 5, v{dst}
    v_and_b32 v{c}, 3, v2
    v_lshl_add_u32 v{dst}, v{c}, 3, v{dst}
    v_lshrrev_b32 v{c}, 1, v{a}
    v_lshl_add_u32 v{dst}, v{c}, 6, v{dst}
    """)
def mg_tr_setup(k, sigma, gx):
    a, b, c = MG.T, MG.T+1, MG.T+2
    tr_addr(k, b, sigma, a, c)
    k(f"""
    v_xor_b32 v{b}, s{gx}, v{b}
    v_add_u32 v{MG.vTr}, s30, v{b}
    v_xor_b32 v{b}, 64, v{b}
    v_add_u32 v{MG.vTr+1}, s30, v{b}
    """)
def dma_addr(k, vdst, pitch, a, b):
    k(f"""
    v_lshrrev_b32 v{a}, 3, v2
    v_mul_u32_u24 v{vdst}, {pitch}, v{a}
    v_bfe_u32 v{a}, v2, 4, 1
    v_lshlrev_b32 v{a}, 2, v{a}
    v_and_b32 v{b}, 7, v2
    v_xor_b32 v{a}, v{a}, v{b}
    v_lshl_add_u32 v{vdst}, v{a}, 4, v{vdst}
    """)
class Seg:
    def __init__(self, nsteps, ring_srd, s_ring, pitch, s_fo, ring_is_A, sigma, fo_flags=""):
        self.__dict__.update(locals())
    def ring(self, j):
        sl = j % 3
        return ([f"s_add_u32 m0, s30, {sl*2048}",
                 f"s_add_u32 s31, s{self.s_ring}, {8*self.pitch}",
                 f"buffer_load_dwordx4 v{MG.vDma}, s[{self.ring_srd}:{self.ring_srd+3}], s{self.s_ring} offen lds"],
                [f"s_add_u32 m0, s30, {sl*2048+1024}",
                 f"s_add_u32 s{self.s_ring}, s{self.s_ring}, {16*self.pitch}",
                 f"buffer_load_dwordx4 v{MG.vDma}, s[{self.ring_srd}:{self.ring_srd+3}], s31 offen lds"])
    def fo(self, j):
        sl = j % 4
        return [f"buffer_load_dwordx4 {vr(MG.FO+sl*8,4)}, v{MG.vL0}, s[20:23], s{self.s_fo} offen{self.fo_flags}",
                f"buffer_load_dwordx4 {vr(MG.FO+sl*8+4,4)}, v{MG.vL1}, s[20:23], s{self.s_fo} offen{self.fo_flags}",
                f"s_add_u32 s{self.s_fo}, s{self.s_fo}, 2048"]
    def group(self, j):
        r = self.ring(j); return r[0] + r[1] + self.fo(j)
    def trs(self, j):
        sl = j % 3; buf = j & 1
        ustep = 1024 if self.sigma else 512
        return [f"ds_read_b64_tr_b16 {vr(MG.RF+buf*8+g*4+u*2,2)}, v{MG.vTr+g} offset:{sl*2048+u*ustep}" for g in range(2) for u in range(2)]
    def mfmas(self, j):
        sl = j % 4; buf = j & 1
        out = []
        for mi in range(2):
            for ni in range(2):
                a = MG.ACC + (mi*2+ni)*16
                if self.ring_is_A: A = vr(MG.RF+buf*8+mi*4, 4); B = vr(MG.FO+sl*8+ni*4, 4)
                else:              A = vr(MG.FO+sl*8+mi*4, 4); B = vr(MG.RF+buf*8+ni*4, 4)
                out.append(f"v_mfma_f32_32x32x16_bf16 {vr(a,16)}, {A}, {B}, {'0' if j == 0 else vr(a,16)}")
        return out
    def run(self, k):
        n = self.nsteps
        for j in range(3): k.emit(self.group(j))
        k("s_waitcnt vmcnt(10)")
        k.emit(self.trs(0))
        k("s_waitcnt lgkmcnt(0)")
        k.emit(self.group(3))
        for i in range(n):
            last = min(i+3, n-1)
            m = self.mfmas(i)
            if i + 1 < n:
                k(f"s_waitcnt vmcnt({2 + 4*(last-(i+1))})")
                k.emit(self.trs(i+1))
            else:
                k("s_waitcnt vmcnt(0)")
            more = i + 4 < n
            SL = os.environ.get("SL")
            sp = (lambda: k(f"s_sleep {SL}")) if SL else (lambda: None)
            k(m[0])
            if i + 1 < n: k("s_waitcnt lgkmcnt(0)")
            sp()
            k(m[1])
            if more: k.emit(self.ring(i+4)[0])
            sp()
            k(m[2])
            if more: k.emit(self.ring(i+4)[1])
            sp()
            k(m[3])
            if more: k.emit(self.fo(i+4))
            sp()
def mbar(k):
    k("s_waitcnt lgkmcnt(0)")
    lds_add(k, MG.vZ, MG.vOne, [C_M])
    k("s_add_u32 s34, s34, 4")
    l = k.lab("mbar")
    k(f"""
{l}:
    ds_read_b32 v{MG.T}, v{MG.vZ} offset:{C_M}
    s_waitcnt lgkmcnt(0)
    v_readfirstlane_b32 s4, v{MG.T}
    s_cmp_ge_u32 s4, s34
    s_cbranch_scc1 {l}d
    s_sleep 1
    s_branch {l}
{l}d:
    """)
def mbar_arrive(k):
    lds_add(k, MG.vZ, MG.vOne, [C_M])
    k("s_add_u32 s34, s34, 4")
def mbar_wait(k):
    l = k.lab("mbw")
    k(f"""
{l}:
    ds_read_b32 v{MG.T}, v{MG.vZ} offset:{C_M}
    s_waitcnt lgkmcnt(0)
    v_readfirstlane_b32 s4, v{MG.T}
    s_cmp_ge_u32 s4, s34
    s_cbranch_scc1 {l}d
    s_sleep 1
    s_branch {l}
{l}d:
    """)
def mg_reduce(k):
    A = MG.ACC; T = MG.FO
    k("s_nop 15")
    for h in range(2):
        for r in range(1, 4):
            for q in range(2):
                k(f"ds_write_b128 v{MG.vWr}, {vr(A+r*16+(2*h+q)*4,4)} offset:{(r-1)*2048+q*1024}")
        mbar(k)
        for r in range(1, 4):
            for q in range(2):
                k(f"ds_read_b128 {vr(T+((r-1)*2+q)*4,4)}, v{MG.vRd+r-1} offset:{(r-1)*2048+q*1024}")
        if h == 0: mbar(k)
        else: k("s_waitcnt lgkmcnt(0)")
        for j in range(8):
            k(f"v_add_f32 v{T+j}, v{T+j}, v{T+8+j}")
            k(f"v_add_f32 v{A+8*h+j}, v{A+8*h+j}, v{T+16+j}")
        for j in range(8):
            k(f"v_add_f32 v{A+8*h+j}, v{A+8*h+j}, v{T+j}")


def lds_wait_min4(k, vaddr, off, vt, target, sleep=0, st=4):
    l = k.lab("lm"); d = k.lab("lmd")
    k(f"""
{l}:
    ds_read_b128 {vr(vt,4)}, v{vaddr} offset:{off}
    s_waitcnt lgkmcnt(0)
    v_min3_u32 v{vt}, v{vt}, v{vt+1}, v{vt+2}
    v_min_u32 v{vt}, v{vt}, v{vt+3}
    s_nop 0
    v_readfirstlane_b32 s{st}, v{vt}
    s_cmp_ge_u32 s{st}, {target}
    s_cbranch_scc1 {d}
    s_sleep {sleep}
    s_branch {l}
{d}:
    """)
RM = int(os.environ.get("RM", "4"))
TD = int(os.environ.get("TD", "49"))
MP1 = os.environ.get("MP1", "3"); MP2 = os.environ.get("MP2", "3")
TO = int(os.environ.get("TO", "18"))
assert len({TD % 16, TO % 16, 4, 12, 14, 15}) == 6
def fused():
    k = Kern(NAME, 256, 768, 163840, nvgpr=144, nsgpr=96)
    k.name_short = "f"
    end = "L_end"
    k(f"""
    s_cmp_ge_u32 s2, 256
    s_cbranch_scc1 {end}
    s_load_dwordx16 s[36:51], s[0:1], 0
    s_load_dwordx8 s[52:59], s[0:1], 64
    v_lshrrev_b32 v1, 6, v0
    v_and_b32 v2, 63, v0
    v_readfirstlane_b32 s3, v1
    s_and_b32 s24, s2, 7
    s_lshr_b32 s25, s2, 3          ; i
    s_cmp_lg_u32 s3, 11
    s_cbranch_scc1 L_nopf
    s_getpc_b64 s[4:5]
L_pc:
    v_lshlrev_b32 v136, 7, v2
    global_load_dword v137, v136, s[4:5]
    v_add_u32 v136, 8192, v136
    global_load_dword v137, v136, s[4:5]
    v_add_u32 v136, 8192, v136
    v_min_u32 v136, {end}-L_pc-4, v136
    global_load_dword v137, v136, s[4:5]
L_nopf:
    """)
    stamp(k, 0)
    k(f"""
    s_lshr_b32 s26, s24, 1
    s_lshl_b32 s26, s26, 3
    s_and_b32 s6, s25, 7
    s_add_u32 s26, s26, s6         ; tb 0..31
    s_and_b32 s27, s24, 1
    s_lshl_b32 s27, s27, 2
    s_lshr_b32 s7, s25, 3
    s_add_u32 s27, s27, s7         ; hq 0..7
    s_cmp_lt_u32 s3, 4
    s_cbranch_scc1 L_comp
    s_cmp_ge_u32 s3, 8
    s_cbranch_scc1 L_m_start
    s_sub_u32 s33, s3, 4           ; lw
    s_lshl_b32 s28, s26, 16
    s_lshl_b32 s29, s33, 14
    s_add_u32 s28, s28, s29
    s_mul_i32 s29, s33, {16*3072}
    s_lshl_b32 s30, s27, 7
    s_add_u32 s29, s29, s30        ; w off
    s_lshl_b32 s30, s33, 11
    v_lshrrev_b32 v3, 3, v2
    v_lshlrev_b32 v3, 10, v3
    v_lshrrev_b32 v4, 4, v2
    v_and_b32 v5, 7, v2
    v_xor_b32 v5, v5, v4
    v_lshl_add_u32 v3, v5, 4, v3   ; vXe
    v_xor_b32 v6, 64, v3           ; vXo
    """)
    dma_addr(k, 7, 3072, 4, 5)
    k(f"""
    s_lshl_b32 s8, s7, 1
    s_add_u32 s8, s8, s6
    s_add_u32 s4, s7, s6
    s_cmp_lt_u32 {RM}, 8
    s_cselect_b32 s8, s4, s8
    s_and_b32 s34, s8, {RM-1}
    s_mov_b32 s9, 0
    s_waitcnt lgkmcnt(0)
    """)
    srd(k, 12, P_X, 2048*512*2)
    srd(k, 16, P_WQKV, 512*1536*2)
    k(f"""
L_ld:
    s_cmp_lt_u32 s9, 2
    s_cbranch_scc1 L_ld_issue
    s_cmp_eq_u32 s9, 3
    s_cbranch_scc1 L_ld_issue
    s_cmp_eq_u32 s9, 2
    s_cbranch_scc0 L_ld_w16
    s_waitcnt vmcnt(8)
L_ld_w16:
    s_waitcnt vmcnt(16)
    s_barrier
L_ld_issue:
    s_xor_b32 s8, s9, s34
    s_lshl_b32 s10, s8, 7
    s_add_u32 s10, s10, s28
    s_mul_i32 s11, s8, {64*3072}
    s_add_u32 s11, s11, s29
    """)
    for i in range(2):
        k(f"""
        s_add_u32 m0, s30, {i*1024}
        s_add_u32 s31, s10, {i*8192}
        buffer_load_dwordx4 v{6 if i else 3}, s[12:15], s31 offen lds
        """)
        for ty in range(3):
            k(f"""
            s_add_u32 m0, s30, {8192 + ty*8192 + i*1024}
            s_add_u32 s31, s11, {8*i*3072 + ty*1024}
            buffer_load_dwordx4 v7, s[16:19], s31 offen lds
            """)
    k(f"""
    s_add_u32 s30, s30, 32768
    s_and_b32 s30, s30, 0x1ffff
    s_add_u32 s9, s9, 1
    s_cmp_lt_u32 s9, 8
    s_cbranch_scc1 L_ld
    """)
    srd(k, 20, P_WS, WS_BYTES)
    NT1 = 1 if "T" in OPT else 0
    if NT1:
        srd(k, 12, P_W1, 2048*1376*2)
        k(f"""
        s_lshr_b32 s4, s24, 1
        s_lshl_b32 s4, s4, 7
        s_lshl_b32 s5, s25, 2
        s_add_u32 s4, s4, s5
        s_add_u32 s4, s4, s33
        s_mul_i32 s10, s4, {4*2752}
        s_and_b32 s5, s24, 1
        s_mul_i32 s5, s5, 1344
        s_add_u32 s10, s10, s5
        v_lshrrev_b32 v4, 4, v2
        v_mul_u32_u24 v4, 2752, v4
        v_and_b32 v5, 15, v2
        v_lshlrev_b32 v5, 7, v5
        v_min_u32 v5, 1532, v5
        v_add_u32 v4, v4, v5
        buffer_load_dword v8, v4, s[12:15], s10 offen
        """)
    k(f"""
    s_waitcnt vmcnt({16+NT1})
    s_barrier
    s_waitcnt vmcnt({8+NT1})
    s_barrier
    s_waitcnt vmcnt({NT1})
    s_barrier
    s_barrier
    s_branch L_attn
    """)
    vXa = 8; vWa = 12
    ACC = 32; FX = 80; FW = 88
    k(f"""
L_comp:
    s_and_b32 s32, s3, 1           ; tg
    s_lshr_b32 s33, s3, 1          ; hp
    v_and_b32 v14, 31, v2
    v_lshrrev_b32 v15, 5, v2
    v_lshrrev_b32 v16, 1, v14
    v_and_b32 v16, 7, v16
    s_lshl_b32 s8, s32, 12
    v_lshl_add_u32 v17, v14, 7, s8
    """)
    for ks in range(4):
        k(f"""
        v_add_u32 v18, {2*ks}, v15
        v_xor_b32 v18, v18, v16
        v_lshl_add_u32 v{vXa+ks}, v18, 4, v17
        """)
    tr_addr(k, vWa, False, 16, 17)
    k(f"""
    s_lshl_b32 s8, s33, 6
    v_xor_b32 v{vWa}, s8, v{vWa}
    v_add_u32 v{vWa}, 8192, v{vWa}
    """)
    for i in range(48): k(f"v_mov_b32 v{ACC+i}, 0")
    k(f"""
    v_lshlrev_b32 v20, 4, v2
    v_and_b32 v21, 0x33, v2
    v_bfe_u32 v23, v2, 2, 1
    v_lshl_or_b32 v21, v23, 3, v21
    v_bfe_u32 v23, v2, 3, 1
    v_lshl_or_b32 v21, v23, 2, v21
    v_lshlrev_b32 v21, 4, v21
    v_bfe_u32 v22, v2, 4, 1
    v_lshlrev_b32 v22, 17, v22
    v_lshl_add_u32 v22, v15, 9, v22
    v_and_b32 v23, 15, v2
    v_lshl_add_u32 v22, v23, 4, v22
    s_lshl_b32 s8, s27, 1
    s_add_u32 s8, s8, s33
    s_lshl_b32 s9, s26, 1
    s_add_u32 s9, s9, s32          ; tile
    s_lshl_b32 s28, s8, 17
    s_lshl_b32 s10, s9, 10
    s_add_u32 s28, s28, s10
    s_lshl_b32 s29, s28, 1
    s_add_u32 s29, s29, {KV}       ; K off
    s_lshl_b32 s30, s8, 13
    s_lshl_b32 s10, s9, 7
    s_add_u32 s30, s30, s10
    s_add_u32 s30, s30, {F1}
    s_mov_b32 s10, {f32(0.25*LOG2E)}
    s_mov_b32 s11, s10
    s_waitcnt lgkmcnt(0)
    """)
    srd(k, 20, P_WS, WS_BYTES)
    if "E" in OPT or "G" in OPT:
        srd(k, 12, P_W1, 2048*1376*2)
        k(f"""
        s_lshr_b32 s4, s24, 1
        s_lshl_b32 s4, s4, 7
        s_lshl_b32 s5, s25, 2
        s_add_u32 s4, s4, s5
        s_add_u32 s4, s4, s3
        s_mul_i32 s4, s4, {4*2752}
        s_and_b32 s5, s24, 1
        s_mul_i32 s5, s5, 1344
        s_add_u32 s4, s4, s5
        v_lshrrev_b32 v28, 4, v2
        v_mul_u32_u24 v28, 2752, v28
        v_and_b32 v29, 15, v2
        v_lshlrev_b32 v29, 7, v29
        v_min_u32 v29, 1532, v29
        v_add_u32 v28, v28, v29
        s_mov_b32 s6, s4
        s_mul_i32 s7, s3, {int(os.environ.get("GS", "1"))}
        s_add_u32 s7, s7, {int(os.environ.get("G0", "1"))}
        """)
        if "E" in OPT: k("buffer_load_dword v29, v28, s[12:15], s6 offen")
    def gt():
        if "G" not in OPT: return
        l = k.lab("gt")
        k(f"""
        s_sub_u32 s7, s7, 1
        s_cmp_lg_u32 s7, 0
        s_cbranch_scc1 {l}
        buffer_load_dword v29, v28, s[12:15], s6 offen
        .p2align 3
{l}:
        .p2align 3
        """)
    def reads(sl, ks, buf):
        out = [f"ds_read_b128 {vr(FX+buf*4,4)}, v{vXa+ks} offset:{sl*32768}"]
        for ty in range(3):
            for u in range(2):
                out.append(f"ds_read_b64_tr_b16 {vr(FW+buf*12+ty*4+u*2,2)}, v{vWa} offset:{sl*32768+ty*8192+ks*2048+u*512}")
        return out
    stamp(k, 1)
    k("s_barrier")
    stamp(k, 2)
    k.emit(reads(0, 0, 0))
    k("s_mov_b32 s9, 0")
    k(".p2align 3")
    k("L_qloop:")
    for sl in range(2):
        for ks in range(4):
            buf = ks & 1
            def mf(ty):
                x = vr(FX+buf*4, 4)
                a = ACC + ty*16; w = vr(FW+buf*12+ty*4, 4)
                if ty == 2: k(f"v_mfma_f32_32x32x16_bf16 {vr(a,16)}, {x}, {w}, {vr(a,16)}")
                else:       k(f"v_mfma_f32_32x32x16_bf16 {vr(a,16)}, {w}, {x}, {vr(a,16)}")
            def w(n): k(f"s_waitcnt lgkmcnt({n})"); k("s_nop 0")
            if ks < 3:
                r = reads(sl, ks+1, buf ^ 1)
                w(4); mf(0); k.emit(r[0:3])
                w(5); mf(1); k.emit(r[3:5])
                w(5); mf(2); k.emit(r[5:7])
            elif sl == 0:
                r = reads(1, 0, buf ^ 1)
                w(4); mf(0); w(2); mf(1)
                k("s_waitcnt lgkmcnt(0)")
                k("s_barrier")
                k.emit(r[0:3]); mf(2); k.emit(r[3:7])
                gt()
            else:
                r = reads(0, 0, buf ^ 1)
                w(4); mf(0)
                for a in range(vXa, vXa+5): k(f"v_xor_b32 v{a}, 0x10000, v{a}")
                k(f"""
                s_add_u32 s9, s9, 1
                s_cmp_ge_u32 s9, 4
                s_waitcnt lgkmcnt(2)
                .p2align 3
                """)
                mf(1)
                k("s_waitcnt lgkmcnt(0)")
                k("s_barrier")
                k("s_cbranch_scc1 L_qlast")
                k(".p2align 3")
                k.emit(r[0:3]); mf(2); k.emit(r[3:7])
                gt()
                k("s_branch L_qloop")
                k("L_qlast:")
                mf(2)
    k(f"v_mov_b32 v24, {CNT}")
    get_nonce(k, 24, 25)
    k("s_nop 8")
    stamp(k, 3)
    for ty in (1, 2, 0):
        a = ACC + ty*16
        if ty == 0:
            for r in range(0, 16, 2): k(f"v_pk_mul_f32 {vr(a+r,2)}, {vr(a+r,2)}, s[10:11]")
        for half in range(2):
            d = FX + (ty*2+half)*4
            for j in range(4):
                k(f"v_cvt_pk_bf16_f32 v{d+j}, v{a+half*8+2*j}, v{a+half*8+2*j+1}")
            if ty == 0:
                k(f"s_add_u32 s31, s28, {half*65536}")
                k(f"buffer_store_dwordx4 {vr(d,4)}, v20, s[20:23], s31 offen sc1")
            elif ty == 1:
                k(f"s_add_u32 s31, s29, {half*131072}")
                k(f"buffer_store_dwordx4 {vr(d,4)}, v21, s[20:23], s31 offen sc1")
            else:
                k(f"buffer_store_dwordx4 {vr(d,4)}, v22, s[20:23], s29 offen offset:{1024+half*256} sc1")
    stamp(k, 4)
    flag_store(k, 30, 24, 25)
    k(f"v_mov_b32 v26, {CNT}")
    k("v_mov_b32 v27, 1")
    lds_add(k, 26, 27, [C_PUB])
    Q, C, O, S0, S1, K0, K1, V0a, V0b, V1 = 4, 8, 24, 40, 56, 72, 76, 80, 84, 88
    IDX, AK, AV0, AV1, T0, T1, VZ, VC, L16, ONE = 92, 93, 94, 95, 96, 97, 98, 99, 100, 101
    S = [S0, S1]; V0 = [V0a, V0b]; KF = [K0, K1]
    k(f"""
L_attn:
    s_lshl_b32 s26, s24, 2
    s_lshr_b32 s27, s25, 3
    s_add_u32 s26, s26, s27        ; head
    s_and_b32 s27, s25, 7
    s_lshl_b32 s27, s27, 3
    s_add_u32 s27, s27, s3         ; qtile
    v_lshlrev_b32 v{L16}, 4, v2
    s_lshl_b32 s28, s26, 17
    s_lshl_b32 s29, s3, 12
    s_add_u32 s28, s28, s29
    s_add_u32 s28, s28, {KV}
    s_mul_i32 s29, s3, {2*KVP}
    s_lshl_b32 s30, s26, 16
    s_lshl_b32 s31, s27, 10
    s_add_u32 s30, s30, s31        ; Q off
    v_mov_b32 v{IDX}, 0xdddddddd
    v_mov_b32 v{VZ}, {CNT}
    v_mov_b32 v{VC}, {CNT + 4}
    v_mov_b32 v{ONE}, 1
    s_mov_b32 s8, 0
    s_mov_b32 s9, 0
    """)
    stamp(k, 5)
    k(f"""
    s_cmp_lg_u32 s3, 4
    s_cbranch_scc1 L_a_wait
    v_mul_u32_u24 v{T0}, {KVP}, v2
    v_mov_b32 v{S0}, 0x3f803f80
    v_mov_b32 v{S0+1}, 0x3f803f80
    v_mov_b32 v{S0+2}, 0x3f803f80
    v_mov_b32 v{S0+3}, 0x3f803f80
    ds_write_b128 v{T0}, {vr(S0,4)} offset:2048
    """)
    get_nonce(k, VZ, T0)
    k(f"""
    s_lshr_b32 s31, s26, 1
    s_lshl_b32 s31, s31, 13
    s_add_u32 s31, s31, {F1}
    v_lshlrev_b32 v{T1}, 7, v2
    """)
    lds_wait(k, VZ, C_PUB, T0, 4)
    flag_poll(k, T1, 31, T0)
    lds_add(k, VZ, ONE, [C_GO])
    k("s_branch L_a_go")
    k("L_a_wait:")
    get_nonce(k, VZ, T0)
    lds_wait(k, VZ, C_GO, T0, 1)
    k("L_a_go:")
    stamp(k, 6)
    def kvdma(c):
        out = []
        for i in range(2):
            out += [f"s_add_u32 m0, s29, {(8*c+i)*KVP}",
                    f"s_add_u32 s32, s28, {(8*c+i)*2048}",
                    f"buffer_load_dwordx4 v{L16}, s[20:23], s32 offen sc1 lds",
                    f"buffer_load_dwordx4 v{L16}, s[20:23], s32 offen offset:1024 sc1 lds"]
        return out
    k(f"buffer_load_dwordx4 {vr(Q,4)}, v{L16}, s[20:23], s30 offen sc1")
    k.emit(kvdma(0))
    k(f"""
    s_cmp_ge_u32 s3, 4
    s_cbranch_scc1 L_a_young
    s_waitcnt vmcnt(0)
    """)
    lds_add(k, VZ, ONE, [0])
    k("s_branch L_a_c0")
    k("L_a_young:")
    k.emit(kvdma(1))
    for c in range(1, 8):
        if c + 2 <= 7:
            k.emit(kvdma(c+1))
            k("s_waitcnt vmcnt(8)")
        else:
            k(f"s_waitcnt vmcnt({(7-c)*4})")
        lds_add(k, VZ, ONE, [4*c, C_ALL])
    k("L_a_c0:")
    lds_wait(k, VZ, 0, T0, 4, sleep=0)
    stamp(k, 7)
    k(f"""
    ds_read_b128 {vr(K0,4)}, v{L16}
    s_waitcnt lgkmcnt(0)
    v_mfma_f32_32x32x16_bf16 {vr(S0,16)}, {vr(K0,4)}, {vr(Q,4)}, 0
    s_nop 15
    v_max3_f32 v{T0}, v{S0}, v{S0+1}, v{S0+2}
    """)
    for j in range(3, 15, 2): k(f"v_max3_f32 v{T0}, v{T0}, v{S0+j}, v{S0+j+1}")
    k(f"v_max_f32 v{T0}, v{T0}, v{S0+15}")
    k("L_a_setmax:")
    k(f"""
    v_mov_b32 v{T1}, v{T0}
    v_mov_b32 v{AK}, v{L16}
    v_and_b32 v{C}, 16, v2
    v_permlane32_swap_b32 v{T0}, v{T1}
    v_cmp_eq_u32 vcc, 0, v{C}
    v_mov_b32 v{C}, 1024
    v_mov_b32 v{C+1}, 768
    v_max_f32 v{T0}, v{T0}, v{T1}
    v_cndmask_b32 v{AV0}, v{C}, v{L16}, vcc
    v_cndmask_b32 v{AV1}, v{C+1}, v{L16}, vcc
    s_nop 0
    ds_read_b128 {vr(K0,4)}, v{AK}
    ds_read_b128 {vr(V0a,4)}, v{AV0} offset:1024
    ds_read_b128 {vr(V1,4)}, v{AV0} offset:1024
    ds_read_b128 {vr(K1,4)}, v{AK} offset:{KVP}
    """)
    for r in range(16): k(f"v_sub_f32 v{C+r}, 0, v{T0}")
    for r in range(16): k(f"v_mov_b32 v{O+r}, 0")
    for r in range(8): k(f"v_mov_b32 v{S1+8+r}, 0")
    k(f"""
    s_waitcnt lgkmcnt(0)
    v_mfma_f32_32x32x16_bf16 {vr(S0,16)}, {vr(K0,4)}, {vr(Q,4)}, {vr(C,16)}
    ds_read_b128 {vr(K0,4)}, v{AK} offset:{2*KVP}
    s_mov_b32 s33, 0
    s_cmp_lt_u32 s3, 4
    s_cselect_b32 s32, {TD // 16}, 99
    s_setprio 2
    s_nop 10
    """)
    k(".p2align 6")
    k("L_a_loop:")
    NT = 16
    for t in range(NT):
        cur = S[t & 1]; prv = S[(t+1) & 1]
        e = lambda a, b: [f"v_exp_f32 v{cur+i}, v{cur+i}" for i in range(a, b)]
        k.emit(e(0, 2))
        k(f"v_smfmac_f32_32x32x32_bf16 {vr(O,16)}, {vr(V1,4)}, {vr(prv+8,8)}, v{IDX}")
        k(f"ds_read_b128 {vr(V1,4)}, v{AV1} offset:{t*KVP+1024+256}")
        k(f"ds_read_b128 {vr(V0[(t+1)&1],4)}, v{AV0} offset:{(t+1)*KVP+1024}")
        k.emit(e(2, 6))
        k(f"v_mfma_f32_32x32x16_bf16 {vr(prv,16)}, {vr(KF[(t+1)&1],4)}, {vr(Q,4)}, {vr(C,16)}")
        k(f"ds_read_b128 {vr(KF[(t+1)&1],4)}, v{AK} offset:{(t+3)*KVP}")
        k.emit(e(6, 12))
        k(f"v_smfmac_f32_32x32x32_bf16 {vr(O,16)}, {vr(V0[t&1],4)}, {vr(cur,8)}, v{IDX}")
        k("s_waitcnt lgkmcnt(1)")
        if t % 8 == 4: k("s_cmp_lg_u32 s9, 0")
        elif t == TD % 16: k("s_cmp_lg_u32 s33, s32")
        elif t == NT-2: k("s_add_u32 s33, s33, 1")
        elif t == NT-1: k(f"s_cmp_lt_u32 s33, {64//NT}")
        else: k("s_nop 0")
        k.emit(e(12, 16))
        if t % 8 == 4:
            sk = k.lab("rdy"); pl = k.lab("poll")
            k(f"""
            s_cbranch_scc1 {sk}
{pl}:
            ds_read_b32 v{T0}, v{VC}
            ds_read_b32 v{T1}, v{VZ} offset:{C_ALL}
            s_waitcnt lgkmcnt(0)
            v_readfirstlane_b32 s4, v{T0}
            v_readfirstlane_b32 s5, v{T1}
            s_cmp_lt_u32 s4, 4
            s_cbranch_scc1 {pl}
            s_cmp_ge_u32 s5, 29
            s_cselect_b32 s9, 1, 0
            v_add_u32 v{VC}, 4, v{VC}
            .p2align 3
{sk}:
            """)
        if t == TD % 16:
            sk = k.lab("lad")
            k(f"""
            s_cbranch_scc1 {sk}
            s_setprio 1
{sk}:
            """)
    k(f"""
    v_add_u32 v{AK}, {NT*KVP}, v{AK}
    v_add_u32 v{AV0}, {NT*KVP}, v{AV0}
    v_add_u32 v{AV1}, {NT*KVP}, v{AV1}
    s_cbranch_scc1 L_a_loop
    v_smfmac_f32_32x32x32_bf16 {vr(O,16)}, {vr(V1,4)}, {vr(S1+8,8)}, v{IDX}
    s_waitcnt lgkmcnt(0)
    s_setprio 3
    s_nop 15
    s_cmp_lg_u32 s8, 0
    s_cbranch_scc1 L_a_fin
    v_max3_f32 v{T0}, abs(v{O}), abs(v{O+1}), abs(v{O+2})
    v_max3_f32 v{T0}, v{T0}, abs(v{O+3}), abs(v{O+4})
    v_max3_f32 v{T0}, v{T0}, abs(v{O+5}), abs(v{O+6})
    v_max_f32 v{T0}, v{T0}, abs(v{O+7})
    v_add_f32 v{T1}, v{O}, v{O+1}
    v_add_f32 v{T1}, v{T1}, v{O+2}
    v_add_f32 v{T1}, v{T1}, v{O+3}
    v_add_f32 v{T1}, v{T1}, v{O+4}
    v_add_f32 v{T1}, v{T1}, v{O+5}
    v_add_f32 v{T1}, v{T1}, v{O+6}
    v_add_f32 v{T1}, v{T1}, v{O+7}
    s_mov_b32 s4, {f32(2.0**40)}
    s_mov_b32 s5, {f32(2.0**120)}
    v_cmp_gt_f32 vcc, s4, v{O+8}
    v_cmp_gt_f32 s[6:7], s5, v{T0}
    v_cmp_o_f32 s[10:11], v{T1}, v{T1}
    s_and_b64 vcc, vcc, s[6:7]
    s_and_b64 vcc, vcc, s[10:11]
    s_cmp_eq_u64 vcc, exec
    s_cbranch_scc1 L_a_fin
    s_mov_b32 s8, 1
    s_mov_b32 s9, 1
    v_mov_b32 v{AK}, v{L16}
    v_mov_b32 v{T0}, 0xff800000
    s_mov_b32 s33, 0
L_a_maxloop:
    ds_read_b128 {vr(K0,4)}, v{AK}
    s_waitcnt lgkmcnt(0)
    v_mfma_f32_32x32x16_bf16 {vr(S0,16)}, {vr(K0,4)}, {vr(Q,4)}, 0
    v_add_u32 v{AK}, {KVP}, v{AK}
    s_nop 15
    """)
    for j in range(0, 16, 2): k(f"v_max3_f32 v{T0}, v{T0}, v{S0+j}, v{S0+j+1}")
    k(f"""
    s_add_u32 s33, s33, 1
    s_cmp_lt_u32 s33, 64
    s_cbranch_scc1 L_a_maxloop
    s_branch L_a_setmax
L_a_fin:
    v_rcp_f32 v{T0}, v{O+8}
    """)
    lds_add(k, VZ, ONE, [C_DONE])
    stamp(k, 8)
    k(f"""
    s_lshr_b32 s4, s27, 1
    s_lshl_b32 s4, s4, 6
    s_lshl_b32 s5, s26, 1
    s_add_u32 s4, s4, s5
    s_and_b32 s5, s27, 1
    s_add_u32 s4, s4, s5           ; (st*32+h)*2+sg
    s_lshl_b32 s30, s4, 10
    s_add_u32 s30, s30, {OF}
    s_lshl_b32 s31, s4, 7
    s_add_u32 s31, s31, {FO_}
    """)
    for r in range(8): k(f"v_mul_f32 v{O+r}, v{O+r}, v{T0}")
    for j in range(4): k(f"v_cvt_pk_bf16_f32 v{K0+j}, v{O+2*j}, v{O+2*j+1}")
    k(f"buffer_store_dwordx4 {vr(K0,4)}, v{L16}, s[20:23], s30 offen sc1")
    flag_store(k, 31, T0, T1)
    stamp(k, 9)
    k(f"""
    s_cmp_ge_u32 s3, 4
    s_cbranch_scc1 L_f_load
    """)
    stamp(k, 10); stamp(k, 11)
    stamp_flush(k, 12)
    k("s_endpgm")
    def final_ids(k):
        if "N" in OPT:
            k("""
            s_lshl_b32 s26, s24, 2
            s_lshr_b32 s27, s25, 3
            s_add_u32 s26, s26, s27        ; st
            s_and_b32 s27, s25, 7          ; dt
            """)
            return
        k(f"""
        s_lshr_b32 s26, s24, 1
        s_lshl_b32 s26, s26, 3
        s_lshr_b32 s27, s25, 2
        s_add_u32 s26, s26, s27
        s_and_b32 s27, s24, 1
        s_lshl_b32 s27, s27, 2
        s_and_b32 s4, s25, 3
        s_add_u32 s27, s27, s4
        """)
    k("L_f_load:")
    final_ids(k)
    srd(k, 12, P_WO, 512*512*2)
    dma_addr(k, 4, 1024, 5, 6)
    k(f"""
    s_sub_u32 s33, s3, 4
    s_lshl_b32 s30, s33, 12
    s_lshl_b32 s28, s26, 16
    s_add_u32 s28, s28, s30
    s_add_u32 s28, s28, {OF}
    s_lshl_b32 s29, s33, 15
    s_lshl_b32 s31, s27, 7
    s_add_u32 s29, s29, s31
    """)
    lds_wait(k, VZ, C_DONE, T0, 8)
    for j in range(4):
        for i in range(4):
            k(f"s_add_u32 m0, s30, {j*32768 + 16384 + i*1024}")
            k(f"s_add_u32 s31, s29, {j*131072 + i*8192}")
            k(f"buffer_load_dwordx4 v4, s[12:15], s31 offen lds")
    stamp(k, 10)
    k(f"""
    s_cmp_lg_u32 s3, 4
    s_cbranch_scc1 L_f_wait
    s_lshl_b32 s31, s26, 13
    s_add_u32 s31, s31, {FO_}
    v_lshlrev_b32 v{T1}, 7, v2
    """)
    flag_poll(k, T1, 31, T0, sleep=1)
    lds_add(k, VZ, ONE, [C_GO2])
    k("s_branch L_f_go")
    k("L_f_wait:")
    lds_wait(k, VZ, C_GO2, T0, 1, sleep=0)
    k("L_f_go:")
    stamp(k, 11)
    for j in range(4):
        k(f"s_add_u32 m0, s30, {j*32768}")
        k(f"s_add_u32 s31, s28, {j*16384}")
        for i in range(4):
            k(f"buffer_load_dwordx4 v{L16}, s[20:23], s31 offen offset:{i*1024} sc1 lds")
    for j in range(4):
        k(f"s_waitcnt vmcnt({12-4*j})")
        lds_add(k, VZ, ONE, [C_ST+4*j])
    stamp_flush(k, 12)
    k("s_endpgm")

    A = MG.ACC
    XR = 16; GR = 24; XF = 32; GW = 48; RS = 56; PK = 64
    k(f"""
L_m_start:
    s_sub_u32 s33, s3, 8           ; mw
    s_lshl_b32 s28, s26, 6
    s_lshl_b32 s29, s27, 3
    s_add_u32 s28, s28, s29
    s_lshl_b32 s29, s33, 1
    s_add_u32 s29, s29, s28
    s_lshl_b32 s31, s29, 10
    v_lshlrev_b32 v{MG.vL16}, 4, v2
    v_mov_b32 v{MG.vZ}, {CNT}
    v_mov_b32 v{MG.vOne}, 1
    v_mov_b32 v15, 0
    s_waitcnt lgkmcnt(0)
    """)
    srd(k, 12, P_X, 2048*512*2)
    srd(k, 16, P_GW, 1024)
    k(f"""
    buffer_load_dwordx4 {vr(XR,4)}, v{MG.vL16}, s[12:15], s31 offen
    buffer_load_dwordx4 {vr(XR+4,4)}, v{MG.vL16}, s[12:15], s31 offen offset:1024
    buffer_load_dwordx4 {vr(GR,4)}, v{MG.vL16}, s[16:19], 0 offen
    """)
    srd(k, 20, P_WS, WS_BYTES)
    srd(k, 60, P_DBG, 256)
    k(f"""
    s_cmp_lg_u32 s33, 1
    s_cbranch_scc1 L_m_i1
    s_cmp_lg_u32 s2, 0
    s_cbranch_scc1 L_m_i1
    s_memrealtime s[4:5]
    s_waitcnt lgkmcnt(0)
    s_or_b32 s4, s4, 1
    v_mov_b32 v136, s4
    s_mov_b64 exec, 1
    buffer_store_dword v136, v15, s[60:63], 0 offen sc1
    s_mov_b64 exec, -1
L_m_i1:
    s_cmp_lg_u32 s33, 0
    s_cbranch_scc1 L_m_i2
    v_lshlrev_b32 v136, 2, v2
    v_add_u32 v136, {CNT}, v136
    v_cmp_eq_u32 vcc, 8, v2
    v_mov_b32 v138, 4
    s_nop 0
    v_cndmask_b32 v138, 0, v138, vcc
    ds_write_b32 v136, v138
L_m_i2:
    s_mul_i32 s30, s33, 6144
    s_add_u32 s30, s30, {MRING}
    s_mov_b32 s34, 0
    v_add_u32 v{MG.vWr}, s30, v{MG.vL16}
    """)
    for r in range(1, 4):
        k(f"""
        s_xor_b32 s31, s33, {r}
        s_mul_i32 s31, s31, 6144
        s_add_u32 s31, s31, {MRING}
        v_add_u32 v{MG.vRd+r-1}, s31, v{MG.vL16}
        """)
    k("s_mov_b32 s10, 0xffff0000")
    stamp(k, 1)
    k("s_waitcnt lgkmcnt(0)")
    k("s_barrier")
    stamp(k, 2)
    k("s_waitcnt vmcnt(0)")
    for j in range(4):
        k(f"v_lshlrev_b32 v{GW+2*j}, 16, v{GR+j}")
        k(f"v_and_b32 v{GW+2*j+1}, s10, v{GR+j}")
    for t in range(2):
        for j in range(4):
            k(f"v_lshlrev_b32 v{XF+8*t+2*j}, 16, v{XR+4*t+j}")
            k(f"v_and_b32 v{XF+8*t+2*j+1}, s10, v{XR+4*t+j}")
    for t in range(2):
        k(f"v_add_f32 v{RS+t}, v{XF+8*t}, v{XF+8*t+1}")
        k(f"v_mul_f32 v{RS+2+t}, v{XF+8*t}, v{GW}")
    for i in range(1, 8):
        for t in range(2):
            if i >= 2: k(f"v_add_f32 v{RS+t}, v{RS+t}, v{XF+8*t+i}")
            k(f"v_fmac_f32 v{RS+2+t}, v{XF+8*t+i}, v{GW+i}")
    def wave_reduce(regs):
        pad = max(0, 3 - len(regs))
        steps = [f"{c} row_mask:0xf bank_mask:0xf bound_ctrl:0" for c in ("row_shr:1", "row_shr:2", "row_shr:4", "row_shr:8")]
        steps += ["row_bcast:15 row_mask:0xa bank_mask:0xf", "row_bcast:31 row_mask:0xc bank_mask:0xf"]
        for c in steps:
            for r in regs: k(f"v_add_f32_dpp v{r}, v{r}, v{r} {c}")
            if pad: k(f"s_nop {pad-1}")
    k("s_nop 1")
    wave_reduce([RS, RS+1, RS+2, RS+3])
    k(f"s_mov_b32 s10, {f32(1.0/512)}")
    k(f"s_mov_b32 s11, {f32(-LOG2E)}")
    for t in range(2): k(f"v_mul_f32 v{RS+t}, s10, v{RS+t}")
    for t in range(2): k(f"v_mul_f32 v{RS+2+t}, s11, v{RS+2+t}")
    for t in range(2): k(f"v_readlane_b32 s{4+t}, v{RS+t}, 63")
    for t in range(2): k(f"v_exp_f32 v{RS+2+t}, v{RS+2+t}")
    for t in range(2):
        for i in range(8): k(f"v_subrev_f32 v{XF+8*t+i}, s{4+t}, v{XF+8*t+i}")
    for t in range(2): k(f"v_add_f32 v{RS+2+t}, 1.0, v{RS+2+t}")
    for t in range(2): k(f"v_rcp_f32 v{RS+2+t}, v{RS+2+t}")
    for t in range(2): k(f"v_mul_f32 v{RS+t}, v{XF+8*t}, v{XF+8*t}")
    for i in range(1, 8):
        for t in range(2): k(f"v_fmac_f32 v{RS+t}, v{XF+8*t+i}, v{XF+8*t+i}")
    k("s_barrier")
    k("buffer_load_dword v136, v15, s[60:63], 0 offen sc1")
    k("s_nop 1")
    wave_reduce([RS, RS+1])
    k(f"v_mov_b32 v{PK}, {f32(1e-5)}")
    for t in range(2): k(f"v_fma_f32 v{RS+t}, v{RS+t}, s10, v{PK}")
    for t in range(2): k(f"v_rsq_f32 v{RS+t}, v{RS+t}")
    k("s_nop 0")
    for t in range(2): k(f"v_readlane_b32 s{4+t}, v{RS+t}, 63")
    k(f"""
    s_lshl_b32 s31, s29, 2
    s_add_u32 s31, s31, {GF}
    s_mov_b32 exec_lo, 0
    s_mov_b32 exec_hi, 0x80000000
    buffer_store_dwordx2 {vr(RS+2,2)}, v15, s[20:23], s31 offen sc1
    s_mov_b64 exec, -1
    s_lshl_b32 s31, s33, 11
    s_add_u32 s31, s31, {MRING}
    v_lshlrev_b32 v{MG.T}, 5, v2
    v_add_u32 v{MG.T}, s31, v{MG.T}
    """)
    for t in range(2):
        for i in range(8): k(f"v_mul_f32 v{XF+8*t+i}, s{4+t}, v{XF+8*t+i}")
    for i in range(8): k(f"v_cvt_pk_bf16_f32 v{PK+i}, v{XF+i}, v{XF+8+i}")
    k(f"""
    ds_write_b128 v{MG.T}, {vr(PK,4)}
    ds_write_b128 v{MG.T}, {vr(PK+4,4)} offset:16
    s_lshl_b32 s31, s33, 9
    s_add_u32 s31, s31, {MRING}
    v_lshlrev_b32 v{MG.T+1}, 2, v2
    v_add_u32 v{MG.T+1}, s31, v{MG.T+1}
    s_waitcnt lgkmcnt(0)
    s_barrier
    ds_read2st64_b32 {vr(XR,2)}, v{MG.T+1} offset0:0 offset1:8
    ds_read2st64_b32 {vr(XR+2,2)}, v{MG.T+1} offset0:16 offset1:24
    ds_read2st64_b32 {vr(XR+4,2)}, v{MG.T+1} offset0:1 offset1:9
    ds_read2st64_b32 {vr(XR+6,2)}, v{MG.T+1} offset0:17 offset1:25
    v_lshrrev_b32 v{MG.T}, 5, v2
    v_lshlrev_b32 v{MG.T}, 10, v{MG.T}
    v_and_b32 v{MG.T+2}, 31, v2
    v_lshl_add_u32 v{MG.T}, v{MG.T+2}, 4, v{MG.T}
    s_lshr_b32 s31, s28, 4
    s_lshl_b32 s31, s31, 11
    s_bfe_u32 s4, s28, 0x10003
    s_lshl_b32 s4, s4, 9
    s_add_u32 s31, s31, s4
    s_lshl_b32 s4, s33, 19
    s_add_u32 s31, s31, s4
    s_add_u32 s31, s31, {HF}
    s_add_u32 s4, s31, 262144
    s_waitcnt lgkmcnt(0)
    buffer_store_dwordx4 {vr(XR,4)}, v{MG.T}, s[20:23], s31 offen sc1
    buffer_store_dwordx4 {vr(XR+4,4)}, v{MG.T}, s[20:23], s4 offen sc1
    s_cmp_lg_u32 s33, 1
    s_cbranch_scc1 L_m_i3
    s_mov_b32 s5, 0
    s_waitcnt vmcnt(3)
L_m_tag:
    v_readfirstlane_b32 s4, v136
    s_cmp_lg_u32 s4, 0
    s_cbranch_scc1 L_m_tagok
    buffer_load_dword v136, v15, s[60:63], 0 offen sc1
    s_add_u32 s5, s5, 1
    s_cmp_lt_u32 s5, {SPIN}
    s_waitcnt vmcnt(0)
    s_cbranch_scc1 L_m_tag
L_m_tagok:
    ds_write_b32 v{MG.vZ}, v136 offset:{C_NONCE}
    s_waitcnt lgkmcnt(0)
L_m_i3:
    s_barrier
    """)
    get_nonce(k, MG.vZ, MG.T)
    k(f"""
    s_waitcnt vmcnt(0)
    s_barrier
    s_cmp_lg_u32 s33, 1
    s_cbranch_scc1 L_m_i4
    s_lshl_b32 s31, s28, 4
    s_add_u32 s31, s31, {FH}
    """)
    flag_store(k, 31, MG.T, MG.T+1)
    def g1_ids(k, sfb, sdq, skq):
        k(f"""
        s_and_b32 s{sfb}, s24, 1
        s_mul_i32 s{sfb}, s{sfb}, 30
        s_add_u32 s{sfb}, s{sfb}, s25
        s_and_b32 s{sdq}, s{sfb}, 3
        s_lshr_b32 s{sfb}, s{sfb}, 2
        s_lshr_b32 s{skq}, s24, 1
        """)
    k(f"""
L_m_i4:
    s_lshr_b32 s8, s33, 1          ; a
    s_and_b32 s9, s33, 1           ; b
    """)
    srd(k, 12, P_W1, 2048*1376*2)
    srd(k, 16, P_B1, 1376*2)
    srd(k, 60, P_W2, 1376*2048*2)
    HB = 80; FW1 = 112; vW = 3; vWt = 6; vH2 = 7
    g1_ids(k, 26, 27, 6)
    k(f"""
    s_lshl_b32 s28, s27, 1
    s_add_u32 s28, s28, s8
    s_lshl_b32 s28, s28, 18
    s_lshl_b32 s29, s6, 16
    s_add_u32 s28, s28, s29
    s_lshl_b32 s29, s9, 10
    s_add_u32 s28, s28, s29
    s_add_u32 s28, s28, {HF}       ; h src
    s_lshl_b32 s29, s6, 5
    s_add_u32 s29, s29, s33
    s_mul_i32 s29, s29, {16*2752}
    s_mul_i32 s7, s26, 192
    s_add_u32 s29, s29, s7         ; w1 src
    s_lshl_b32 s32, s27, 1
    s_add_u32 s32, s32, s26
    s_and_b32 s32, s32, 7
    s_mul_i32 s7, s33, 3072
    s_add_u32 s7, s7, {MRING}      ; w1 dst
    v_add_u32 v{vH2}, 4096, v{MG.vL16}
    v_lshrrev_b32 v128, 5, v2
    v_bfe_u32 v129, v2, 2, 2
    v_lshl_add_u32 v129, v128, 3, v129
    v_mul_u32_u24 v{vWt}, 192, v129
    v_bfe_u32 v129, v2, 4, 1
    v_lshl_add_u32 v{vWt}, v129, 5, v{vWt}
    v_and_b32 v129, 3, v2
    v_lshl_add_u32 v{vWt}, v129, 3, v{vWt}
    v_add_u32 v{vWt}, {MRING}, v{vWt}
    """)
    for i in range(3):
        k(f"""
        v_add_u32 v128, {64*i}, v2
        v_mul_u32_u24 v129, 43691, v128
        v_lshrrev_b32 v129, 19, v129
        v_mul_u32_u24 v130, 12, v129
        v_sub_u32 v128, v128, v130
        v_mul_u32_u24 v129, 2752, v129
        v_lshl_add_u32 v{vW+i}, v128, 4, v129
        """)
    k(f"""
    s_lshl_b32 s4, s6, 7
    s_lshl_b32 s5, s25, 2
    s_add_u32 s4, s4, s5
    s_add_u32 s4, s4, s33
    s_mul_i32 s10, s4, {4*2752}
    s_and_b32 s5, s24, 1
    s_mul_i32 s5, s5, 1344
    s_add_u32 s10, s10, s5
    v_lshrrev_b32 v140, 4, v2
    v_mul_u32_u24 v140, 2752, v140
    v_and_b32 v141, 15, v2
    v_lshlrev_b32 v141, 7, v141
    v_min_u32 v141, 1532, v141
    v_add_u32 v140, v140, v141
    s_lshl_b32 s31, s6, 13
    s_add_u32 s31, s31, {FH}
    v_lshlrev_b32 v15, 7, v2
    """)
    for i in range(48): k(f"v_mov_b32 v{A+i}, 0")
    k("s_barrier")
    k("s_barrier")
    EARLY = "E" in OPT or "T" in OPT
    if not EARLY:
        k("s_barrier"); k("s_barrier")
        k("s_setprio 3")
        lds_wait(k, MG.vZ, C_PUB, MG.T, 4, sleep=3)
        if "F" in OPT:
            k(f"s_cmp_lt_u32 s33, {4 - int(os.environ.get('FN', '2'))}")
            k("s_cbranch_scc1 L_m_noft")
            k("buffer_load_dword v141, v140, s[12:15], s10 offen")
            k("L_m_noft:")
        k("s_cmp_lg_u32 s33, 0")
        k("s_cbranch_scc1 L_m_nofh")
        flag_poll(k, 15, 31, MG.T)
        lds_add(k, MG.vZ, MG.vOne, [C_ALL])
        k("L_m_nofh:")
        lds_wait(k, MG.vZ, C_ALL, MG.T, 29, sleep=2)
    def wdma(j):
        k(f"""
        s_xor_b32 s11, s32, {j}
        s_mul_i32 s11, s11, {64*2752}
        s_add_u32 s11, s11, s29
        """)
        for i in range(3):
            k(f"s_add_u32 m0, s7, {(j&1)*12288 + i*1024}")
            k("s_nop 0")
            k(f"buffer_load_dwordx4 v{vW+i}, s[12:15], s11 offen lds")
    def hsrc(j):
        k(f"""
        s_xor_b32 s10, s32, {j}
        s_lshl_b32 s10, s10, 13
        s_add_u32 s10, s10, s28
        """)
    def hload(j, ks):
        return f"buffer_load_dwordx4 {vr(HB+(j&1)*16+ks*4,4)}, v{vH2 if ks >= 2 else MG.vL16}, s[20:23], s10 offen offset:{(ks&1)*2048} sc1"
    k("s_setprio 3")
    k(f"""
    s_mov_b32 s11, s10
    v_lshrrev_b32 v142, 3, v2
    v_and_b32 v143, 7, v2
    v_lshlrev_b32 v142, 12, v142
    v_lshl_add_u32 v142, v143, 7, v142
    s_lshl_b32 s42, s25, 2
    s_add_u32 s42, s42, s33
    s_lshl_b32 s42, s42, 15
    s_lshl_b32 s4, s6, 10
    s_add_u32 s42, s42, s4
    s_add_u32 s43, s42, {128*32768}
    buffer_load_dword v141, v140, s[12:15], s11 offen
    s_cmp_lt_u32 s25, 30
    s_cbranch_scc1 L_m_g1go
    """)
    if "N" in OPT:
        srd(k, 12, P_WO, 512*512*2)
        k(f"""
        v_lshrrev_b32 v142, 2, v2
        v_and_b32 v143, 3, v2
        v_lshlrev_b32 v142, 12, v142
        v_lshl_add_u32 v142, v143, 7, v142
        s_sub_u32 s42, s25, 30         ; 0/1
        s_mul_i32 s43, s33, 22
        s_add_u32 s42, s42, s43
        s_lshl_b32 s42, s42, 16
        s_lshl_b32 s4, s24, 9
        s_add_u32 s42, s42, s4
        s_mov_b32 s43, 0
L_m_w2l:
        buffer_load_dword v141, v142, s[60:63], s42 offen
        s_add_u32 s42, s42, 131072
        s_add_u32 s43, s43, 1
        s_cmp_lt_u32 s43, 11
        s_cbranch_scc1 L_m_w2l
        """)
        k("s_branch L_m_skipred")
    else:
        k("""
        buffer_load_dword v141, v142, s[60:63], s42 offen
        buffer_load_dword v141, v142, s[60:63], s43 offen
        s_branch L_m_g1done
        """)
    k(f"""
L_m_g1go:
    """)
    wdma(0)
    for j in range(2):
        hsrc(j)
        for ks in range(4): k(hload(j, ks))
    W2AT = int(os.environ.get("W2AT", "-1"))
    def w2t():
        k("buffer_load_dword v141, v142, s[60:63], s42 offen")
        k("buffer_load_dword v141, v142, s[60:63], s43 offen")
    if W2AT < 0: w2t()
    stamp(k, 3)
    k(f"s_setprio {MP1}")
    def wr(j, ks, buf):
        return [f"ds_read_b64_tr_b16 {vr(FW1+buf*12+t*4+u*2,2)}, v{vWt} offset:{(j&1)*12288+ks*3072+u*768+t*64}" for t in range(3) for u in range(2)]
    MG.T = 136
    k(f"s_waitcnt vmcnt({4 + (2 if W2AT < 0 else 0)})")
    mbar_arrive(k)
    for j in range(8):
        k("s_setprio 3")
        mbar_wait(k)
        k(f"s_setprio {MP1}")
        if j == 0: stamp(k, 4)
        k.emit(wr(j, 0, 0))
        if j < 7: wdma(j+1)
        if j == W2AT: w2t()
        if j < 6: hsrc(j+2)
        for ks in range(4):
            buf = ks & 1
            r = wr(j, ks+1, buf ^ 1) if ks < 3 else []
            if ks == 3 and j < 7:
                k(f"s_waitcnt vmcnt({3 if j < 6 else 0}) lgkmcnt(0)")
                mbar_arrive(k)
            for t in range(3):
                if not (ks == 3 and j < 7): k(f"s_waitcnt lgkmcnt({4 if r else 4-2*t})")
                k(f"v_mfma_f32_32x32x16_bf16 {vr(A+t*16,16)}, {vr(FW1+buf*12+t*4,4)}, {vr(HB+(j&1)*16+ks*4,4)}, {vr(A+t*16,16)}")
                k.emit(r[2*t:2*t+2])
            if j < 6: k(hload(j+2, ks))
    MG.T = 128
    k("s_setprio 3")
    stamp(k, 5)
    k(f"""
    s_mul_i32 s10, s27, 15
    s_add_u32 s10, s10, s26
    s_lshl_b32 s10, s10, 2
    s_add_u32 s10, s10, s33        ; (dq*15+fb)*4+g
    s_mul_i32 s10, s10, {3*8192}
    s_lshl_b32 s11, s6, 11
    s_add_u32 s10, s10, s11
    s_add_u32 s10, s10, {PF}
    s_lshl_b32 s11, s27, 4
    s_add_u32 s11, s11, s26
    s_lshl_b32 s11, s11, 2
    s_add_u32 s11, s11, s33
    s_lshl_b32 s11, s11, 2
    s_add_u32 s11, s11, s6
    s_lshl_b32 s11, s11, 7
    s_add_u32 s11, s11, {FP}
    """)
    for j in range(3):
        for q in range(8): k(f"v_cvt_pk_bf16_f32 v{HB+8*j+q}, v{A+16*j+2*q}, v{A+16*j+2*q+1}")
        k(f"s_add_u32 s4, s10, {j*8192}")
        k(f"buffer_store_dwordx4 {vr(HB+8*j,4)}, v{MG.vL16}, s[20:23], s4 offen sc1")
        k(f"buffer_store_dwordx4 {vr(HB+8*j+4,4)}, v{MG.vL16}, s[20:23], s4 offen offset:1024 sc1")
    flag_store(k, 11, MG.T, MG.T+1)
    if W2AT == 9: k("buffer_load_dword v141, v142, s[60:63], s42 offen")
    mbar(k)
    k("L_m_g1done:")
    srd(k, 12, P_WO, 512*512*2)
    k(f"""
    s_cmp_lg_u32 s33, 3
    s_cbranch_scc1 L_m_red
    """)
    if "N" in OPT:
        k(f"""
        v_lshlrev_b32 v130, 7, v2
        s_lshl_b32 s10, s25, 14
        s_add_u32 s11, s10, 8192
        buffer_load_dword v132, v130, s[12:15], s10 offen
        buffer_load_dword v132, v130, s[12:15], s11 offen
        """)
    if "p" not in OPT and "N" not in OPT:
        k(f"""
        v_lshrrev_b32 v128, 2, v2
        v_and_b32 v129, 3, v2
        v_lshlrev_b32 v130, 10, v128
        v_lshl_add_u32 v130, v129, 7, v130
        s_and_b32 s27, s24, 1
        s_lshl_b32 s27, s27, 9
        s_lshl_b32 s10, s25, 14
        s_add_u32 s10, s10, s27
        buffer_load_dword v132, v130, s[12:15], s10 offen
        """)
    if EARLY:
        lds_wait(k, MG.vZ, C_ALL, MG.T, 28, sleep=3)
        k("s_cmp_ge_u32 s25, 30")
        k("s_cbranch_scc1 L_m_now2")
        for q in range(4):
            k(f"s_sub_u32 s4, s42, {q*32768}")
            k(f"s_sub_u32 s5, s43, {q*32768}")
            k("buffer_load_dword v141, v140, s[60:63], s4 offen")
            k("buffer_load_dword v141, v140, s[60:63], s5 offen")
            if "W" in OPT: k("s_waitcnt vmcnt(0)")
        k("L_m_now2:")
    stamp(k, 6)
    k("s_branch L_m_g2")
    k("L_m_red:")
    g1_ids(k, 26, 27, 28)
    k(f"""
    s_cmp_ge_u32 s25, 30
    s_cbranch_scc1 L_m_skipred
    s_mul_i32 s29, s26, 3
    s_add_u32 s29, s29, s33
    s_cmp_ge_u32 s29, 44
    s_cbranch_scc1 L_m_skipred
    s_lshl_b32 s10, s27, 4
    s_add_u32 s10, s10, s26
    s_lshl_b32 s10, s10, 2
    s_add_u32 s10, s10, s28
    s_lshl_b32 s10, s10, 9
    s_add_u32 s10, s10, {FP}
    v_and_b32 v15, 3, v2
    v_lshlrev_b32 v15, 7, v15
    s_lshl_b32 s11, s29, 6
    v_lshrrev_b32 v{MG.T+1}, 5, v2
    v_lshlrev_b32 v{MG.T+1}, 3, v{MG.T+1}
    """)
    for q in range(4): k(f"buffer_load_dwordx2 {vr(MG.RF+2*q,2)}, v{MG.T+1}, s[16:19], s11 offen offset:{q*16}")
    flag_poll(k, 15, 10, MG.T, sleep=2)
    stamp(k, 6)
    k(f"""
    s_mul_i32 s10, s27, 15
    s_add_u32 s10, s10, s26
    s_lshl_b32 s10, s10, 2
    s_add_u32 s10, s10, s28
    s_mul_i32 s10, s10, 3
    s_add_u32 s10, s10, s33
    s_lshl_b32 s10, s10, 13
    s_add_u32 s10, s10, {PF}
    s_add_u32 s11, s10, 4096
    """)
    P = MG.FO
    for q in range(8):
        k(f"buffer_load_dwordx4 {vr(P+4*q,4)}, v{MG.vL16}, s[20:23], s{10 if q < 4 else 11} offen offset:{(q&3)*1024} sc1")
    B = A + 16; T = A + 32
    c0 = math.sqrt(2/math.pi)
    k(f"""
    s_mov_b32 s6, 0x00003f80       ; (1,0)
    s_mov_b32 s7, 0x3f800000       ; (0,1)
    s_mov_b32 s10, {f32(-2*LOG2E*c0*0.044715)}
    s_mov_b32 s11, s10
    v_mov_b32 v{B}, {f32(-2*LOG2E*c0)}
    v_mov_b32 v{B+1}, {f32(-2*LOG2E*c0)}
    """)
    for q in range(8):
        k(f"v_lshlrev_b32 v{A+2*q}, 16, v{MG.RF+q}")
        k(f"v_and_b32 v{A+2*q+1}, 0xffff0000, v{MG.RF+q}")
    for kq in range(4):
        k(f"s_waitcnt vmcnt({6-2*kq})")
        for j in range(8):
            k(f"v_dot2_f32_bf16 v{A+2*j}, v{P+8*kq+j}, s6, v{A+2*j}")
            k(f"v_dot2_f32_bf16 v{A+2*j+1}, v{P+8*kq+j}, s7, v{A+2*j+1}")
    k("s_nop 2")
    if "D" in OPT: stamp(k, 1)
    for r in range(0, 16, 2): k(f"v_pk_mul_f32 {vr(T+r,2)}, {vr(A+r,2)}, {vr(A+r,2)}")
    for r in range(0, 16, 2): k(f"v_pk_fma_f32 {vr(T+r,2)}, {vr(T+r,2)}, s[10:11], {vr(B,2)}")
    for r in range(0, 16, 2): k(f"v_pk_mul_f32 {vr(T+r,2)}, {vr(T+r,2)}, {vr(A+r,2)}")
    for r in range(16): k(f"v_exp_f32 v{T+r}, v{T+r}")
    for r in range(0, 16, 2): k(f"v_pk_add_f32 {vr(T+r,2)}, {vr(T+r,2)}, 1.0 op_sel_hi:[1,0]")
    for r in range(16): k(f"v_rcp_f32 v{T+r}, v{T+r}")
    for r in range(0, 16, 2): k(f"v_pk_mul_f32 {vr(A+r,2)}, {vr(A+r,2)}, {vr(T+r,2)}")
    for j in range(8): k(f"v_cvt_pk_bf16_f32 v{B+j}, v{A+2*j}, v{A+2*j+1}")
    k(f"""
    s_lshl_b32 s4, s27, 1
    s_lshr_b32 s5, s28, 1
    s_add_u32 s4, s4, s5           ; dt
    s_and_b32 s5, s28, 1           ; di
    s_mul_i32 s10, s4, {UKS*2048}
    s_lshl_b32 s31, s29, 12
    s_add_u32 s10, s10, s31
    s_lshl_b32 s31, s5, 10
    s_add_u32 s10, s10, s31
    s_add_u32 s10, s10, {UF}
    buffer_store_dwordx4 {vr(B,4)}, v{MG.vL16}, s[20:23], s10 offen sc1
    buffer_store_dwordx4 {vr(B+4,4)}, v{MG.vL16}, s[20:23], s10 offen offset:2048 sc1
    s_lshl_b32 s10, s4, 14
    s_lshl_b32 s31, s29, 8
    s_add_u32 s10, s10, s31
    s_lshl_b32 s31, s5, 7
    s_add_u32 s10, s10, s31
    s_add_u32 s10, s10, {FU}
    """)
    if "D" in OPT: stamp(k, 2)
    flag_store(k, 10, MG.T+1, MG.T+2)
    if "D" in OPT: stamp(k, 3)
    k("s_branch L_m_g2")
    k("L_m_skipred:")
    stamp(k, 6)
    k("L_m_g2:")
    lds_add(k, MG.vZ, MG.vOne, [C_H])
    final_ids(k)
    srd(k, 16, P_B2, 2048*2)
    k(f"""
    s_mul_i32 s28, s33, {22*16*4096}
    s_lshl_b32 s31, s26, 7
    s_add_u32 s28, s28, s31
    s_mul_i32 s29, s27, {UKS*2048}
    s_mul_i32 s31, s33, {22*2048}
    s_add_u32 s29, s29, s31
    s_add_u32 s29, s29, {UF}
    s_lshl_b32 s10, s9, 6
    s_lshl_b32 s31, s8, 10
    v_xor_b32 v{MG.vL0}, s31, v{MG.vL16}
    v_xor_b32 v{MG.vL1}, 1024, v{MG.vL0}
    """)
    dma_addr(k, MG.vDma, 4096, MG.T, MG.T+1)
    mg_tr_setup(k, True, 10)
    seg2 = Seg(22, 60, 28, 4096, 29, False, True, fo_flags=" sc1")
    lds_wait(k, MG.vZ, C_H, MG.T, 4, sleep=3)
    if "D" in OPT: stamp(k, 4)
    if W2AT == 9: k("buffer_load_dword v141, v142, s[60:63], s43 offen")
    k(f"""
    s_cmp_ge_u32 s33, 2
    s_cbranch_scc1 L_m_uw
    v_min_u32 v15, 43, v2
    v_lshlrev_b32 v15, 7, v15
    s_lshl_b32 s10, s27, 14
    s_mul_i32 s31, s33, {44*128}
    s_add_u32 s10, s10, s31
    s_add_u32 s10, s10, {FU}
    """)
    flag_poll(k, 15, 10, MG.T, sleep=4)
    lds_add(k, MG.vZ, MG.vOne, [C_C0])
    k("L_m_uw:")
    lds_wait(k, MG.vZ, C_C0, MG.T, 2, sleep=2)
    stamp(k, 7)
    if "N" in OPT:
        k(f"""
        s_and_b32 s31, s26, 3
        s_mul_i32 s31, s31, {88*128}
        s_add_u32 s31, s31, s29
        v_lshlrev_b32 v{MG.T+1}, 7, v2
        v_min_u32 v{MG.T+2}, {23*128}, v{MG.T+1}
        buffer_load_dword v{MG.T+3}, v{MG.T+1}, s[20:23], s31 offen sc1
        s_add_u32 s31, s31, 8192
        buffer_load_dword v{MG.T+3}, v{MG.T+2}, s[20:23], s31 offen sc1
        """)
    elif "t" not in OPT:
        k(f"""
        s_and_b32 s31, s26, 7
        s_mul_i32 s31, s31, {44*128}
        s_add_u32 s31, s31, s29
        v_min_u32 v{MG.T+1}, 43, v2
        v_lshlrev_b32 v{MG.T+1}, 7, v{MG.T+1}
        buffer_load_dword v{MG.T+3}, v{MG.T+1}, s[20:23], s31 offen sc1
        """)
    k(f"s_setprio {MP2}")
    Seg(22, 60, 28, 4096, 29, False, True, fo_flags=" sc1").run(k)
    k("s_setprio 3")
    stamp(k, 8)
    k(f"""
    v_and_b32 v15, 31, v2
    s_lshl_b32 s10, s26, 6
    s_lshl_b32 s31, s9, 5
    s_add_u32 s10, s10, s31
    v_add_u32 v15, s10, v15
    v_lshlrev_b32 v{MG.T+1}, 2, v15
    v_lshlrev_b32 v15, 1, v15
    s_mov_b32 s10, {GF}
    buffer_load_dword v{MG.RF}, v{MG.T+1}, s[20:23], s10 offen sc1
    buffer_load_ushort v{MG.RF+1}, v15, s[16:19], 0 offen
    """)
    mg_reduce(k)
    G = MG.RF; BA = A + 16; FOb = A + 32; FWb = A + 48
    srd(k, 12, P_OUT, 2048*512*2)
    k(f"""
    s_waitcnt vmcnt(0)
    v_sub_f32 v{G+2}, 1.0, v{G}
    v_lshlrev_b32 v{G+1}, 16, v{G+1}
    """)
    for r in range(16): k(f"v_add_f32 v{A+r}, v{A+r}, v{G+1}")
    for r in range(16): k(f"v_mul_f32 v{A+r}, v{A+r}, v{G+2}")
    for r in range(16): k(f"v_mov_b32 v{BA+r}, 0")
    tr_addr(k, 5, True, MG.T, MG.T+1)
    k(f"""
    s_lshl_b32 s31, s8, 6
    v_xor_b32 v5, s31, v5
    v_add_u32 v5, 16384, v5
    s_lshl_b32 s31, s9, 10
    v_add_u32 v4, s31, v{MG.vL16}
    v_and_b32 v10, 31, v2
    v_lshlrev_b32 v10, 10, v10
    v_lshrrev_b32 v11, 5, v2
    v_lshl_add_u32 v10, v11, 4, v10
    s_lshl_b32 s28, s26, 16
    s_lshl_b32 s31, s9, 15
    s_add_u32 s28, s28, s31
    s_lshl_b32 s31, s27, 7
    s_add_u32 s28, s28, s31
    s_lshl_b32 s31, s8, 6
    s_add_u32 s28, s28, s31
    s_mov_b32 s29, 0
    v_add_u32 v6, {C_ST}, v{MG.vZ}
    s_setprio 0
    """)
    stamp(k, 9)
    lds_wait(k, MG.vZ, C_GO2, MG.T, 1, sleep=2)
    k("s_setprio 3")
    stamp(k, 10)
    k("L_f_loop:")
    lds_wait(k, 6, 0, MG.T, 4, sleep=0)
    def rd(ks):
        b = ks & 3
        return [f"ds_read_b128 {vr(FOb+4*b,4)}, v4 offset:{ks*2048}",
                f"ds_read_b64_tr_b16 {vr(FWb+4*b,2)}, v5 offset:{ks*2048}",
                f"ds_read_b64_tr_b16 {vr(FWb+4*b+2,2)}, v5 offset:{ks*2048+1024}"]
    for ks in range(4): k.emit(rd(ks))
    for ks in range(8):
        b = ks & 3
        rem = min(ks+4, 8) - (ks+1)
        k(f"s_waitcnt lgkmcnt({rem*3})")
        k(f"v_mfma_f32_32x32x16_bf16 {vr(BA,16)}, {vr(FWb+4*b,4)}, {vr(FOb+4*b,4)}, {vr(BA,16)}")
        if ks + 4 < 8: k.emit(rd(ks+4))
    k(f"""
    v_add_u32 v4, 32768, v4
    v_add_u32 v5, 32768, v5
    v_add_u32 v6, 4, v6
    s_add_u32 s29, s29, 1
    s_cmp_lt_u32 s29, 4
    s_cbranch_scc1 L_f_loop
    s_nop 12
    """)
    stamp(k, 11)
    for r in range(16): k(f"v_fmac_f32 v{A+r}, v{BA+r}, v{G}")
    Bq = FOb
    for j in range(8): k(f"v_cvt_pk_bf16_f32 v{Bq+j}, v{A+2*j}, v{A+2*j+1}")
    k(f"""
    s_nop 1
    v_permlane32_swap_b32 v{Bq}, v{Bq+2}
    v_permlane32_swap_b32 v{Bq+1}, v{Bq+3}
    v_permlane32_swap_b32 v{Bq+4}, v{Bq+6}
    v_permlane32_swap_b32 v{Bq+5}, v{Bq+7}
    s_nop 1
    buffer_store_dwordx4 {vr(Bq,4)}, v10, s[12:15], s28 offen
    buffer_store_dwordx4 {vr(Bq+4,4)}, v10, s[12:15], s28 offen offset:32
    """)
    stamp_flush(k, 12)
    k(f"{end}:")
    k("s_endpgm")
    return k

if __name__ == "__main__":
    kk = fused()
    out = sys.argv[1] if len(sys.argv) > 1 else "gated_mix__softmax_full_mha__mixer_token_mlp__prompt.s"
    open(out, "w").write(build([kk]))
```
